```python
import torch

def _softmax(x, axis=-1):
    return torch.softmax(x, dim=axis)

def _gelu(x):
    return torch.nn.functional.gelu(x, approximate='tanh')

def _silu(x):
    return torch.nn.functional.silu(x)

def _sigmoid(x):
    return torch.sigmoid(x)

def _layernorm(x, axis=-1, eps=1e-05):
    m = x.mean(dim=axis, keepdim=True)
    v = x.var(dim=axis, keepdim=True, unbiased=False)
    return (x - m) / torch.sqrt(v + eps)

def _scatter_add(tgt, idx, src, axis=0):
    return tgt.clone().index_add_(axis, idx, src)

def _segment_sum(src, seg, n):
    out = torch.zeros((n,) + src.shape[1:], dtype=src.dtype)
    return out.index_add_(0, seg, src)

def _pad(x, pw):
    flat = tuple((v for pair in reversed(pw) for v in pair))
    return torch.nn.functional.pad(x, flat)
kernel_name = 'adaLN_cond__grouped_kv_mqa__dense_activation_silu__prompt'

def setup_inputs():

    _w = lambda a: (lambda t: t.to(torch.bfloat16) if t.is_floating_point() else t)(torch.as_tensor(a))

    def _A_setup():
        B, S, D, H = (1, 2048, 512, 32)
        Dh = D // H
        return {'x': _w((lambda *s: torch.randn(*s, dtype=torch.bfloat16) * 0.05)(B, S, D)), 'wq': _w((lambda *s: torch.randn(*s, dtype=torch.bfloat16) * 0.05)(D, H * Dh)), 'wk': _w((lambda *s: torch.randn(*s, dtype=torch.bfloat16) * 0.05)(D, Dh)), 'wv': _w((lambda *s: torch.randn(*s, dtype=torch.bfloat16) * 0.05)(D, Dh)), 'wo': _w((lambda *s: torch.randn(*s, dtype=torch.bfloat16) * 0.05)(H * Dh, D))}
    _A_in = _A_setup()

    def _B_setup():
        B, S, D, F = (1, 2048, 512, 1376)
        return {'x': _w((lambda *s: torch.randn(*s, dtype=torch.bfloat16) * 0.05)(B, S, D)), 'w1': _w((lambda *s: torch.randn(*s, dtype=torch.bfloat16) * 3.2)(D, F) * D ** (-0.5)), 'w2': _w((lambda *s: torch.randn(*s, dtype=torch.bfloat16) * 1.6)(F, D) * F ** (-0.5))}
    _B_in = _B_setup()
    return {'A_x': _A_in['x'], 'A_wq': _A_in['wq'], 'A_wk': _A_in['wk'], 'A_wv': _A_in['wv'], 'A_wo': _A_in['wo'], 'B_x': _B_in['x'], 'B_w1': _B_in['w1'], 'B_w2': _B_in['w2'], 'c': _w((lambda *s: torch.randn(*s, dtype=torch.bfloat16) * 0.1)(1, 512) * 8.0), 'w_mod': _w((lambda *s: torch.randn(*s, dtype=torch.bfloat16) * 0.1)(512, 6 * 512) * 512 ** (-0.5) * 8.0)}

def reference(A_x, A_wq, A_wk, A_wv, A_wo, B_x, B_w1, B_w2, c, w_mod):

    def _A_ref(x, wq, wk, wv, wo):
        B, S, D = x.shape
        H = 32
        Dh = D // H
        q = (lambda x, *d: x.permute(*d))((x @ wq).reshape(B, S, H, Dh), 0, 2, 1, 3)
        k = x @ wk
        v = x @ wv
        scores = torch.einsum('bhqd,bkd->bhqk', q, k) * Dh ** (-0.5)
        p = _softmax(scores, axis=-1)
        o = torch.einsum('bhqk,bkd->bhqd', p, v)
        return (lambda x, *d: x.permute(*d))(o, 0, 2, 1, 3).reshape(B, S, H * Dh) @ wo

    def _B_ref(x, w1, w2):
        h = torch.einsum('bsd,df->bsf', x, w1)
        h = _silu(h)
        out = torch.einsum('bsf,fd->bsd', h, w2)
        return out
    x = A_x
    mod = (_silu(c) @ w_mod).reshape(c.shape[0], 6, 1, -1)
    sa, ca, ga, sb, cb, gb = (mod[:, 0].clone(), mod[:, 1].clone(), mod[:, 2].clone(), mod[:, 3].clone(), mod[:, 4].clone(), mod[:, 5].clone())
    h = _layernorm(x, axis=-1) * (1 + ca) + sa
    x = x + ga * _A_ref(h, A_wq, A_wk, A_wv, A_wo)
    h = _layernorm(x, axis=-1) * (1 + cb) + sb
    x = x + gb * _B_ref(h, B_w1, B_w2)
    return x
```

```python
import struct


def f2u(x):
    return struct.unpack("<I", struct.pack("<f", x))[0]


def fhex(x):
    return "0x%08x" % f2u(x)


def vr(a, n=None):
    if n is None or n == 1:
        return "v%d" % a
    return "v[%d:%d]" % (a, a + n - 1)


def sr(a, n=None):
    if n is None or n == 1:
        return "s%d" % a
    return "s[%d:%d]" % (a, a + n - 1)


class Asm:
    def __init__(self):
        self.lines = []
        self.vm = []
        self.lg = []

    def __call__(self, s):
        for l in s.strip("\n").split("\n"):
            l = l.strip()
            if l:
                self.lines.append("    " + l)

    def c(self, s):
        self.lines.append("    ; " + s)

    def label(self, l):
        self.lines.append(l + ":")

    def raw(self, s):
        self.lines.append(s)

    def vmem(self, s, tag=None):
        self(s)
        self.vm.append(tag)
        assert len(self.vm) <= 63, "too many outstanding vmem"

    def wait_vm(self, tag):
        if tag not in self.vm:
            return
        idx = len(self.vm) - 1 - self.vm[::-1].index(tag)
        n = len(self.vm) - 1 - idx
        self("s_waitcnt vmcnt(%d)" % n)
        self.vm = self.vm[idx + 1:]

    def wait_vm_all(self):
        self("s_waitcnt vmcnt(0)")
        self.vm = []

    def ds(self, s, tag=None):
        self(s)
        self.lg.append(tag)

    def wait_lg(self, tag):
        if tag not in self.lg:
            return
        idx = len(self.lg) - 1 - self.lg[::-1].index(tag)
        n = len(self.lg) - 1 - idx
        assert n <= 15
        self("s_waitcnt lgkmcnt(%d)" % n)
        self.lg = self.lg[idx + 1:]

    def wait_lg_all(self):
        self("s_waitcnt lgkmcnt(0)")
        self.lg = []

    def srd(self, d, base, nbytes):
        self("s_mov_b32 s%d, s%d" % (d, base))
        self("s_mov_b32 s%d, s%d" % (d + 1, base + 1))
        self("s_mov_b32 s%d, 0x%x" % (d + 2, nbytes))
        self("s_mov_b32 s%d, 0x20000" % (d + 3))

    def srd_off(self, d, base, off, nbytes):
        self("s_add_u32 s%d, s%d, 0x%x" % (d, base, off))
        self("s_addc_u32 s%d, s%d, 0" % (d + 1, base + 1))
        self("s_mov_b32 s%d, 0x%x" % (d + 2, nbytes))
        self("s_mov_b32 s%d, 0x20000" % (d + 3))

    def text(self):
        return "\n".join(self.lines) + "\n"


def kernel_header(name):
    return ".globl %s\n.p2align 8\n.type %s,@function\n%s:\n" % (name, name, name)


def kernel_desc(name, vgpr, sgpr=96, accum=None):
    if accum is None:
        accum = (min(vgpr, 256) + 3) // 4 * 4
    return """.p2align 6
.amdhsa_kernel %s
  .amdhsa_next_free_vgpr %d
  .amdhsa_next_free_sgpr %d
  .amdhsa_accum_offset %d
  .amdhsa_group_segment_fixed_size 0
  .amdhsa_kernarg_size 104
  .amdhsa_user_sgpr_count 2
  .amdhsa_user_sgpr_kernarg_segment_ptr 1
  .amdhsa_system_sgpr_workgroup_id_x 1
.end_amdhsa_kernel
""" % (name, vgpr, sgpr, accum)


def dpp_reduce63(a, regs, op="v_add_f32", upto32=False):
    steps = ["row_shr:1 row_mask:0xf bank_mask:0xf bound_ctrl:0",
             "row_shr:2 row_mask:0xf bank_mask:0xf bound_ctrl:0",
             "row_shr:4 row_mask:0xf bank_mask:0xf bound_ctrl:0",
             "row_shr:8 row_mask:0xf bank_mask:0xf bound_ctrl:0",
             "row_bcast:15 row_mask:0xa bank_mask:0xf"]
    if not upto32:
        steps.append("row_bcast:31 row_mask:0xc bank_mask:0xf")
    pad = max(0, 2 - (len(regs) - 1))
    for st in steps:
        if pad:
            a("s_nop %d" % (pad - 1))
        for r in regs:
            a("%s_dpp v%d, v%d, v%d %s" % (op, r, r, r, st))
```

```python
import sys, os, math
sys.path.insert(0, os.path.dirname(os.path.abspath(__file__)))
from asmlib import *

NAME = "adaLN_cond__grouped_kv_mqa__dense_activation_silu__prompt"
A_X, A_WQ, A_WK, A_WV, A_WO, A_BX, A_W1, A_W2, A_C, A_WMOD, A_OUT, A_DBG, A_WS = [8 * i for i in range(13)]
MOD = 0x000000
STAT = 0x004000
NQ = 0x008000
NKV = 0x009000
WQF = 0x010000
WKVF = 0x090000
WOF = 0x0A0000
W1F = 0x120000
W2F = 0x280000
QF = 0x400000
KF = 0x600000
VF = 0x610000
X1 = 0x700000
H2F = 0x900000
GF = 0xB00000
WS_SIZE = 0x1100000
LOG2E = 1.4426950408889634
QSCALE = 0.25 * LOG2E
TBOUND = 60.0

FORCE_SLOW = os.environ.get("FORCE_SLOW", "0") == "1"


def bf16_round(a, dst, src, tmp=None):
    a("v_cvt_pk_bf16_f32 v%d, v%d, v%d" % (dst, src, src))
    a("v_lshlrev_b32 v%d, 16, v%d" % (dst, dst))


def wave_id(a, sdst, vtmp):
    a("v_lshrrev_b32 v%d, 6, v0" % vtmp)
    a("s_nop 0")
    a("v_readfirstlane_b32 s%d, v%d" % (sdst, vtmp))


K1_MOD, K1_STAT, K1_WQ, K1_WKV, K1_WO, K1_W1, K1_W2 = 0, 192, 256, 288, 296, 328, 416
K1_END = 504


def shuffle_body(a, lbl, karg, src_bytes, rs, lane_row, rowoff, dst, nks, decode, colbytes, nfr=4, frag_rows=16,
                 lanecol_mask=31, dst_calc=None):
    a.label(lbl)
    a("s_load_dwordx2 s[4:5], s[0:1], %d" % karg)
    decode(a)
    a("v_and_b32 v1, %d, v0" % lanecol_mask)
    a("v_lshlrev_b32 v1, 1, v1")
    lane_row(a)
    a("s_mov_b32 s33, %d" % rs)
    a("v_mul_lo_u32 v2, v2, s33")
    a("v_add_u32 v1, v1, v2")
    a("v_and_b32 v3, 63, v0")
    a("v_lshlrev_b32 v3, 4, v3")
    a("s_waitcnt lgkmcnt(0)")
    a.srd(8, 4, src_bytes)
    a.srd(12, 6, WS_SIZE)
    for f in range(nfr):
        for e in range(8):
            a("s_add_u32 s34, s30, %d" % (rowoff(f, e)))
            a.vmem("buffer_load_ushort v%d, v1, s[8:11], s34 offen" % (8 + 8 * f + e), ("f", f))
    for f in range(nfr):
        a.wait_vm(("f", f))
        for p in range(4):
            a("v_lshl_or_b32 v%d, v%d, 16, v%d" % (48 + 4 * f + p, 8 + 8 * f + 2 * p + 1, 8 + 8 * f + 2 * p))
    for f in range(nfr):
        if dst_calc:
            dst_calc(a, f)
        a("buffer_store_dwordx4 %s, v3, s[12:15], s31 offen offset:%d" % (vr(48 + 4 * f, 4), 1024 * f))
    a.vm = []
    a("s_endpgm")


def gen_k1():
    a = Asm()
    a("s_load_dwordx2 s[6:7], s[0:1], %d" % A_WS)
    wave_id(a, 3, 1)
    for lim, lbl in ((K1_STAT, "L_k1_mod"), (K1_WQ, "L_k1_stat"), (K1_WKV, "L_k1_wq"), (K1_WO, "L_k1_wkv"),
                     (K1_W1, "L_k1_wo"), (K1_W2, "L_k1_w1"), (K1_END, "L_k1_w2")):
        a("s_cmp_lt_u32 s2, %d" % lim)
        a("s_cbranch_scc1 %s" % lbl)
    a.label("L_k1_end")
    a("s_endpgm")

    a.label("L_k1_mod")
    a("s_load_dwordx4 s[16:19], s[0:1], %d" % A_C)
    a("""
    s_and_b32 s20, s2, 7
    s_lshr_b32 s21, s2, 3
    s_mul_i32 s20, s20, 6
    s_lshr_b32 s22, s21, 2
    s_add_u32 s20, s20, s22
    s_lshl_b32 s20, s20, 2
    s_and_b32 s21, s21, 3
    s_add_u32 s20, s20, s21
    s_lshl_b32 s21, s20, 5
    v_lshrrev_b32 v1, 1, v0
    v_mul_u32_u24 v2, 6144, v1
    v_and_b32 v3, 1, v0
    v_lshl_add_u32 v2, v3, 4, v2
    v_lshlrev_b32 v1, 1, v1
    s_waitcnt lgkmcnt(0)
    """)
    a.srd(8, 18, 512 * 6144)
    a.srd(12, 16, 1024)
    a.srd(24, 6, WS_SIZE)
    for i in range(4):
        a.vmem("buffer_load_ushort v%d, v1, s[12:15], 0 offen offset:%d" % (4 + i, 256 * i), "c")
    for i in range(4):
        a("s_add_u32 s22, s21, %d" % (i * 128 * 6144))
        a.vmem("buffer_load_dwordx4 %s, v2, s[8:11], s22 offen" % vr(8 + 4 * i, 4), ("w", i))
    a.wait_vm("c")
    a("s_mov_b32 s23, %s" % fhex(-LOG2E))
    for i in range(4):
        a("v_lshlrev_b32 v%d, 16, v%d" % (4 + i, 4 + i))
    for i in range(4):
        a("v_mul_f32 v%d, s23, v%d" % (24 + i, 4 + i))
    for i in range(4):
        a("v_exp_f32 v%d, v%d" % (24 + i, 24 + i))
    a("s_nop 0")
    for i in range(4):
        a("v_add_f32 v%d, 1.0, v%d" % (24 + i, 24 + i))
    for i in range(4):
        a("v_rcp_f32 v%d, v%d" % (24 + i, 24 + i))
    a("s_nop 0")
    for i in range(4):
        a("v_mul_f32 v%d, v%d, v%d" % (4 + i, 4 + i, 24 + i))
    for i in range(4):
        bf16_round(a, 4 + i, 4 + i)
    for i in range(4):
        a.wait_vm(("w", i))
        for p in range(4):
            a("v_lshlrev_b32 v28, 16, v%d" % (8 + 4 * i + p))
            a("v_and_b32 v29, 0xffff0000, v%d" % (8 + 4 * i + p))
            if i == 0:
                a("v_mul_f32 v%d, v28, v4" % (32 + 2 * p))
                a("v_mul_f32 v%d, v29, v4" % (33 + 2 * p))
            else:
                a("v_fmac_f32 v%d, v28, v%d" % (32 + 2 * p, 4 + i))
                a("v_fmac_f32 v%d, v29, v%d" % (33 + 2 * p, 4 + i))
    a("s_nop 1")
    for sh in (2, 4, 8):
        for j in range(8):
            a("v_add_f32_dpp v%d, v%d, v%d row_ror:%d row_mask:0xf bank_mask:0xf" % (32 + j, 32 + j, 32 + j, sh))
    a("""
    v_lshrrev_b32 v1, 4, v0
    v_lshlrev_b32 v1, 2, v1
    v_lshl_add_u32 v1, v3, 9, v1
    v_and_b32 v2, 15, v0
    v_cmp_gt_u32 vcc, 2, v2
    s_and_saveexec_b64 s[28:29], vcc
    """)
    for j in range(8):
        a("ds_write_b32 v1, v%d offset:%d" % (32 + j, 64 * j))
    a("""
    s_mov_b64 exec, s[28:29]
    s_waitcnt lgkmcnt(0)
    s_barrier
    s_cmp_lg_u32 s3, 0
    s_cbranch_scc1 L_k1_end
    v_and_b32 v2, 15, v0
    v_lshlrev_b32 v1, 6, v2
    ds_read_b128 v[8:11], v1
    ds_read_b128 v[12:15], v1 offset:16
    ds_read_b128 v[16:19], v1 offset:32
    ds_read_b128 v[20:23], v1 offset:48
    s_waitcnt lgkmcnt(0)
    """)
    for st in (8, 4, 2, 1):
        for j in range(st):
            a("v_add_f32 v%d, v%d, v%d" % (8 + j, 8 + j, 8 + j + st))
    bf16_round(a, 8, 8)
    a("""
    s_lshr_b32 s22, s20, 5
    s_cmp_eq_u32 s22, 1
    s_cselect_b32 s23, 1.0, 0
    s_cmp_eq_u32 s22, 4
    s_cselect_b32 s23, 1.0, s23
    v_add_f32 v8, s23, v8
    """)
    bf16_round(a, 8, 8)
    a("""
    s_lshl_b32 s22, s20, 6
    v_lshlrev_b32 v1, 2, v2
    v_cmp_gt_u32 vcc, 16, v0
    s_and_saveexec_b64 s[28:29], vcc
    buffer_store_dword v8, v1, s[24:27], s22 offen offset:%d
    s_endpgm
    """ % MOD)
    a.vm = []

    a.label("L_k1_stat")
    a("s_load_dwordx2 s[4:5], s[0:1], %d" % A_X)
    a("""
    s_sub_u32 s20, s2, %d
    s_and_b32 s21, s20, 7
    s_lshr_b32 s20, s20, 3
    s_lshl_b32 s21, s21, 8
    s_lshl_b32 s20, s20, 5
    s_add_u32 s20, s20, s21
    s_lshl_b32 s21, s3, 3
    s_add_u32 s20, s20, s21
    s_lshl_b32 s21, s20, 10
    s_add_u32 s22, s21, 4096
    v_and_b32 v1, 63, v0
    v_lshlrev_b32 v2, 4, v1
    s_waitcnt lgkmcnt(0)
    """ % K1_STAT)
    a.srd(8, 4, 2048 * 1024)
    a.srd(12, 6, WS_SIZE)
    for r in range(8):
        a.vmem("buffer_load_dwordx4 %s, v2, s[8:11], s%d offen offset:%d" % (vr(8 + 4 * r, 4), 21 + (r >> 2), 1024 * (r & 3)), ("x", r))
    U = 48
    for r in range(8):
        a.wait_vm(("x", r))
        for p in range(4):
            a("v_lshlrev_b32 v%d, 16, v%d" % (U + 8 * r + 2 * p, 8 + 4 * r + p))
            a("v_and_b32 v%d, 0xffff0000, v%d" % (U + 8 * r + 2 * p + 1, 8 + 4 * r + p))
        a("v_add_f32 v%d, v%d, v%d" % (112 + r, U + 8 * r, U + 8 * r + 1))
        for e in range(2, 8):
            a("v_add_f32 v%d, v%d, v%d" % (112 + r, 112 + r, U + 8 * r + e))
    a("s_nop 1")
    dpp_reduce63(a, [112 + r for r in range(8)])
    for r in range(8):
        a("v_mul_f32 v%d, %s, v%d" % (112 + r, fhex(1.0 / 512), 112 + r))
    for r in range(8):
        a("v_readlane_b32 s%d, v%d, 63" % (32 + r, 112 + r))
    a("s_nop 1")
    for r in range(8):
        for e in range(8):
            a("v_subrev_f32 v%d, s%d, v%d" % (U + 8 * r + e, 32 + r, U + 8 * r + e))
        a("v_mul_f32 v%d, v%d, v%d" % (112 + r, U + 8 * r, U + 8 * r))
        for e in range(1, 8):
            a("v_fmac_f32 v%d, v%d, v%d" % (112 + r, U + 8 * r + e, U + 8 * r + e))
    a("s_nop 1")
    dpp_reduce63(a, [112 + r for r in range(8)])
    a("s_nop 0")
    for r in range(8):
        a("v_readlane_b32 s%d, v%d, 63" % (40 + r, 112 + r))
    a("v_mov_b32 v4, 0")
    a("v_mov_b32 v5, 1.0")
    a("s_nop 1")
    for r in range(8):
        a("v_writelane_b32 v4, s%d, %d" % (32 + r, r))
        a("v_writelane_b32 v5, s%d, %d" % (40 + r, r))
    a("v_mul_f32 v5, %s, v5" % fhex(1.0 / 512))
    bf16_round(a, 4, 4)
    bf16_round(a, 5, 5)
    a("v_add_f32 v5, %s, v5" % fhex(1e-5))
    bf16_round(a, 5, 5)
    a("v_sqrt_f32 v5, v5")
    a("s_nop 0")
    bf16_round(a, 5, 5)
    a("v_rcp_f32 v6, v5")
    a("s_nop 0")
    a("v_mul_f32 v7, v4, v6")
    a("v_sub_f32 v7, 0, v7")
    a("""
    s_lshl_b32 s21, s20, 3
    s_add_u32 s21, s21, %d
    v_lshlrev_b32 v2, 3, v1
    v_cmp_gt_u32 vcc, 8, v1
    s_and_saveexec_b64 s[28:29], vcc
    buffer_store_dwordx2 v[6:7], v2, s[12:15], s21 offen
    s_endpgm
    """ % STAT)
    a.vm = []

    def lane_nat(a):
        a("v_bfe_u32 v2, v0, 5, 1")
        a("v_lshlrev_b32 v2, 3, v2")

    def lane_pi(a):
        a("v_bfe_u32 v2, v0, 5, 1")
        a("v_lshlrev_b32 v2, 2, v2")

    def dec_wq(a):
        a("""
        s_sub_u32 s20, s2, %d
        s_and_b32 s21, s20, 7
        s_lshr_b32 s20, s20, 3
        s_lshl_b32 s20, s20, 2
        s_add_u32 s20, s20, s3
        s_lshl_b32 s30, s21, 16
        s_lshl_b32 s22, s20, 6
        s_add_u32 s30, s30, s22
        s_lshl_b32 s31, s20, 15
        s_lshl_b32 s22, s21, 12
        s_add_u32 s31, s31, s22
        s_add_u32 s31, s31, %d
        """ % (K1_WQ, WQF))
    shuffle_body(a, "L_k1_wq", A_WQ, 512 * 1024, 1024, lane_nat, lambda f, e: (16 * f + e) * 1024, WQF, 32, dec_wq, 64)

    def dec_w1(a):
        a("""
        s_sub_u32 s20, s2, %d
        s_and_b32 s21, s20, 7
        s_lshr_b32 s20, s20, 3
        s_lshl_b32 s20, s20, 2
        s_add_u32 s20, s20, s3
        s_cmp_ge_u32 s20, 43
        s_cbranch_scc1 L_k1_end
        s_mul_i32 s30, s21, %d
        s_lshl_b32 s22, s20, 6
        s_add_u32 s30, s30, s22
        s_lshl_b32 s31, s20, 15
        s_lshl_b32 s22, s21, 12
        s_add_u32 s31, s31, s22
        s_add_u32 s31, s31, %d
        """ % (K1_W1, 64 * 2752, W1F))
    shuffle_body(a, "L_k1_w1", A_W1, 512 * 2752, 2752, lane_nat, lambda f, e: (16 * f + e) * 2752, W1F, 32, dec_w1, 64)

    def dec_w2(a):
        a("""
        s_sub_u32 s20, s2, %d
        s_lshr_b32 s21, s20, 2
        s_and_b32 s20, s20, 3
        s_lshl_b32 s20, s20, 2
        s_add_u32 s20, s20, s3
        s_lshl_b32 s30, s21, 16
        s_lshl_b32 s22, s20, 6
        s_add_u32 s30, s30, s22
        s_mul_i32 s31, s20, %d
        s_lshl_b32 s22, s21, 12
        s_add_u32 s31, s31, s22
        s_add_u32 s31, s31, %d
        """ % (K1_W2, 86 * 1024, W2F))

    def w2_guard(a, f):
        if f == 2:
            a("s_cmp_eq_u32 s21, 21")
            a("s_cbranch_scc1 L_k1_end")
    shuffle_body(a, "L_k1_w2", A_W2, 1376 * 1024, 1024, lane_pi,
                 lambda f, e: (16 * f + (e & 3) + 8 * (e >> 2)) * 1024, W2F, 86, dec_w2, 64, dst_calc=w2_guard)

    def dec_wo(a):
        a("""
        s_sub_u32 s20, s2, %d
        s_and_b32 s21, s20, 7
        s_lshr_b32 s20, s20, 3
        s_lshl_b32 s20, s20, 2
        s_add_u32 s20, s20, s3
        s_lshl_b32 s30, s21, 16
        s_lshl_b32 s22, s20, 6
        s_add_u32 s30, s30, s22
        s_lshl_b32 s31, s21, 16
        s_lshl_b32 s22, s20, 12
        s_add_u32 s31, s31, s22
        s_add_u32 s31, s31, %d
        """ % (K1_WO, WOF))

    def lane_wo(a):
        a("v_bfe_u32 v2, v0, 5, 1")
        a("v_lshlrev_b32 v2, 4, v2")
        a("v_bfe_u32 v4, v0, 4, 1")
        a("v_lshl_add_u32 v2, v4, 2, v2")
    shuffle_body(a, "L_k1_wo", A_WO, 512 * 1024, 1024, lane_wo,
                 lambda f, e: (32 * (f & 1) + 8 * ((e >> 1) & 1) + 2 * (e >> 2) + (e & 1)) * 1024 + 32 * (f >> 1),
                 WOF, 0, dec_wo, 32, lanecol_mask=15)

    a.label("L_k1_wkv")
    a("s_load_dwordx4 s[16:19], s[0:1], %d" % A_WK)
    a("""
    s_sub_u32 s20, s2, %d
    s_cmp_ge_u32 s20, 2
    s_cbranch_scc1 L_k1_end
    s_lshl_b32 s20, s20, 2
    s_add_u32 s20, s20, s3
    s_lshl_b32 s30, s20, 11
    s_lshl_b32 s31, s20, 12
    s_add_u32 s31, s31, %d
    v_and_b32 v1, 15, v0
    v_lshlrev_b32 v1, 1, v1
    v_bfe_u32 v2, v0, 5, 1
    v_lshl_add_u32 v1, v2, 8, v1
    v_and_b32 v3, 63, v0
    v_lshlrev_b32 v3, 4, v3
    s_waitcnt lgkmcnt(0)
    """ % (K1_WKV, WKVF))
    a.srd(8, 16, 16384)
    a.srd(24, 18, 16384)
    a.srd(12, 6, WS_SIZE)
    for srd, mask in ((8, 0x0000ffff), (24, 0xffff0000)):
        a("s_mov_b32 exec_lo, 0x%x" % mask)
        a("s_mov_b32 exec_hi, 0x%x" % mask)
        for f in range(4):
            for e in range(8):
                a("buffer_load_ushort v%d, v1, s[%d:%d], s30 offen offset:%d" % (8 + 8 * f + e, srd, srd + 3, (16 * f + e) * 32))
        a("s_waitcnt vmcnt(0)")
    a("s_mov_b64 exec, -1")
    for f in range(4):
        for p in range(4):
            a("v_lshl_or_b32 v%d, v%d, 16, v%d" % (48 + 4 * f + p, 8 + 8 * f + 2 * p + 1, 8 + 8 * f + 2 * p))
    for f in range(4):
        a("buffer_store_dwordx4 %s, v3, s[12:15], s31 offen offset:%d" % (vr(48 + 4 * f, 4), 1024 * f))
    a("s_endpgm")
    return a.text(), 120


def gen_k2():
    a = Asm()
    W = 64
    XR = 8
    G, SA = 40, 48
    ACC = 192
    a("s_cmp_ge_u32 s2, 256")
    a("s_cbranch_scc1 L_k2_end")
    a("s_load_dwordx2 s[4:5], s[0:1], %d" % A_X)
    a("s_load_dwordx2 s[6:7], s[0:1], %d" % A_WS)
    wave_id(a, 3, 1)
    a("""
    s_and_b32 s20, s2, 7
    s_lshr_b32 s21, s2, 3
    s_lshr_b32 s22, s21, 2
    s_and_b32 s21, s21, 3
    s_lshl_b32 s20, s20, 3
    s_add_u32 s20, s20, s22
    s_lshl_b32 s22, s22, 2
    v_and_b32 v1, 63, v0
    v_lshlrev_b32 v2, 4, v1
    """)
    a("s_cmp_lt_u32 s3, 4")
    a("s_cbranch_scc1 L_k2_q")
    a("s_cmp_lg_u32 s21, 0")
    a("s_cbranch_scc1 L_k2_end")
    a("s_mov_b32 s23, %d" % WKVF)
    a("s_waitcnt lgkmcnt(0)")
    a.srd(12, 6, WS_SIZE)
    a("s_branch L_k2_loadw")
    a.label("L_k2_q")
    a("""
    s_lshl_b32 s24, s21, 2
    s_add_u32 s24, s24, s3
    s_lshl_b32 s23, s24, 15
    s_add_u32 s23, s23, %d
    s_lshl_b32 s25, s20, 5
    s_lshl_b32 s26, s3, 3
    s_add_u32 s25, s25, s26
    s_lshl_b32 s26, s25, 10
    s_add_u32 s27, s26, 4096
    s_lshl_b32 s28, s25, 3
    s_add_u32 s28, s28, %d
    v_lshlrev_b32 v3, 5, v1
    s_waitcnt lgkmcnt(0)
    s_load_dwordx16 s[32:47], s[6:7], s28
    """ % (WQF, STAT))
    a.srd(8, 4, 2048 * 1024)
    a.srd(12, 6, WS_SIZE)
    for r in range(8):
        a.vmem("buffer_load_dwordx4 %s, v2, s[8:11], s%d offen offset:%d" % (vr(XR + 4 * r, 4), 26 + (r >> 2), 1024 * (r & 3)), ("x", r))
        if r == 0:
            a.vmem("buffer_load_dwordx4 %s, v3, s[12:15], 0 offen offset:%d" % (vr(SA, 4), MOD), ("x", 0))
            a.vmem("buffer_load_dwordx4 %s, v3, s[12:15], 0 offen offset:%d" % (vr(SA + 4, 4), MOD + 16), ("x", 0))
            a.vmem("buffer_load_dwordx4 %s, v3, s[12:15], 0 offen offset:%d" % (vr(G, 4), MOD + 2048), ("x", 0))
            a.vmem("buffer_load_dwordx4 %s, v3, s[12:15], 0 offen offset:%d" % (vr(G + 4, 4), MOD + 2048 + 16), ("x", 0))
    a.label("L_k2_loadw")
    for c in range(8):
        a("s_add_u32 s29, s22, %d" % (4 * c))
        a("s_and_b32 s29, s29, 31")
        a("s_lshl_b32 s29, s29, 10")
        a("s_add_u32 s29, s29, s23")
        for q in range(4):
            a.vmem("buffer_load_dwordx4 %s, v2, s[12:15], s29 offen offset:%d" % (vr(W + 16 * c + 4 * q, 4), 1024 * q), ("w", 4 * c + q))
    a("v_and_b32 v56, 31, v0")
    a("v_bfe_u32 v57, v0, 5, 1")
    for q in range(4):
        a("v_add_u32 v58, %d, v57" % (2 * q))
        a("v_xor_b32 v58, v58, v56")
        a("v_lshlrev_b32 v58, 4, v58")
        a("v_lshl_add_u32 v%d, v57, 9, v58" % (4 + q))
    a("s_cmp_eq_u32 s3, 4")
    a("s_cbranch_scc1 L_k2_bar")
    a("""
    v_lshrrev_b32 v58, 1, v1
    v_subrev_u32 v58, s22, v58
    v_and_b32 v58, 31, v58
    v_lshlrev_b32 v58, 10, v58
    v_and_b32 v59, 1, v1
    v_lshl_add_u32 v58, v59, 9, v58
    s_lshl_b32 s29, s3, 7
    v_add_u32 v58, s29, v58
    v_and_b32 v59, 7, v1
    v_lshlrev_b32 v59, 4, v59
    s_waitcnt lgkmcnt(0)
    """)
    saved_vm = list(a.vm)
    for r in range(8):
        a.wait_vm(("x", r))
        sp = sr(32 + 2 * r, 2)
        for p in range(4):
            x = XR + 4 * r + p
            t = 60 + 2 * (p & 1)
            a("v_lshlrev_b32 v%d, 16, v%d" % (t, x))
            a("v_and_b32 v%d, 0xffff0000, v%d" % (t + 1, x))
            a("v_pk_fma_f32 %s, %s, %s, %s op_sel:[0,0,1] op_sel_hi:[1,0,1]" % (vr(t, 2), vr(t, 2), sp, sp))
            a("v_pk_fma_f32 %s, %s, %s, %s" % (vr(t, 2), vr(t, 2), vr(G + 2 * p, 2), vr(SA + 2 * p, 2)))
            a("v_cvt_pk_bf16_f32 v%d, v%d, v%d" % (x, t, t + 1))
        a("v_xor_b32 v56, %d, v59" % (16 * r))
        a("v_add_u32 v56, v56, v58")
        a("ds_write_b128 v56, %s" % vr(XR + 4 * r, 4))
    a("s_waitcnt lgkmcnt(0)")
    a.label("L_k2_bar")
    a("s_barrier")
    for i in range(8):
        a.ds("ds_read_b128 %s, v%d offset:%d" % (vr(XR + 4 * i, 4), 4 + (i & 3), 1024 * i), ("h", i))
    for i in range(32):
        a.wait_vm(("w", i))
        a.wait_lg(("h", i))
        a("v_mfma_f32_32x32x16_bf16 %s, %s, %s, %s" % (vr(ACC, 16), vr(W + 4 * i, 4), vr(XR + 4 * (i & 7), 4), "0" if i == 0 else vr(ACC, 16)))
        if i + 8 < 32 and i >= 1:
            k = i + 7
            a.ds("ds_read_b128 %s, v%d offset:%d" % (vr(XR + 4 * (k & 7), 4), 4 + (k & 3), 1024 * k), ("h", k))
        if i == 24:
            k = 31
            a.ds("ds_read_b128 %s, v%d offset:%d" % (vr(XR + 4 * (k & 7), 4), 4 + (k & 3), 1024 * k), ("h", k))
    a("s_cmp_eq_u32 s3, 4")
    a("s_cselect_b32 s30, 1.0, %s" % fhex(QSCALE))
    a("v_and_b32 v56, 31, v0")
    a("v_bfe_u32 v57, v0, 5, 1")
    a("s_nop 10")
    for r in range(16):
        a("v_mul_f32 v%d, s30, v%d" % (ACC + r, ACC + r))
    a("v_mul_f32 v60, v%d, v%d" % (ACC, ACC))
    a("v_mul_f32 v61, v%d, v%d" % (ACC + 8, ACC + 8))
    for r in range(1, 8):
        a("v_fmac_f32 v60, v%d, v%d" % (ACC + r, ACC + r))
        a("v_fmac_f32 v61, v%d, v%d" % (ACC + 8 + r, ACC + 8 + r))
    for p in range(8):
        a("v_cvt_pk_bf16_f32 v%d, v%d, v%d" % (XR + p, ACC + 2 * p, ACC + 2 * p + 1))
    a("v_permlane32_swap_b32 v60, v61")
    a("v_add_f32 v60, v60, v61")
    a("s_cmp_eq_u32 s3, 4")
    a("s_cbranch_scc1 L_k2_kv")
    a("""
    v_lshrrev_b32 v58, 3, v56
    v_lshlrev_b32 v58, 13, v58
    v_lshl_add_u32 v58, v57, 9, v58
    v_and_b32 v59, 7, v56
    v_lshl_add_u32 v58, v59, 4, v58
    s_lshl_b32 s29, s20, 15
    s_lshr_b32 s31, s24, 1
    s_lshl_b32 s31, s31, 10
    s_add_u32 s29, s29, s31
    s_and_b32 s31, s24, 1
    s_lshl_b32 s31, s31, 8
    s_add_u32 s29, s29, s31
    s_add_u32 s29, s29, %d
    buffer_store_dwordx4 %s, v58, s[12:15], s29 offen
    buffer_store_dwordx4 %s, v58, s[12:15], s29 offen offset:128
    """ % (QF, vr(XR, 4), vr(XR + 4, 4)))
    dpp_reduce63(a, [60], op="v_max_f32")
    a("""
    s_lshl_b32 s29, s20, 4
    s_add_u32 s29, s29, s24
    s_lshl_b32 s29, s29, 2
    s_add_u32 s29, s29, %d
    v_mov_b32 v58, 0
    s_mov_b32 exec_lo, 0
    s_mov_b32 exec_hi, 0x80000000
    buffer_store_dword v60, v58, s[12:15], s29 offen
    s_endpgm
    """ % NQ)
    a.label("L_k2_kv")
    a("""
    s_lshl_b32 s29, s20, 10
    s_add_u32 s31, s29, %d
    s_add_u32 s29, s29, %d
    buffer_store_dwordx4 %s, v2, s[12:15], s29 offen
    v_lshrrev_b32 v58, 3, v56
    v_lshlrev_b32 v58, 8, v58
    v_lshl_add_u32 v58, v57, 6, v58
    v_and_b32 v59, 7, v56
    v_lshl_add_u32 v58, v59, 1, v58
    """ % (VF, KF, vr(XR, 4)))
    for r in range(8):
        off = ((r & 3) + 8 * (r >> 2)) * 16
        op = "buffer_store_short" if r % 2 == 0 else "buffer_store_short_d16_hi"
        a("%s v%d, v58, s[12:15], s31 offen offset:%d" % (op, XR + 4 + (r >> 1), off))
    dpp_reduce63(a, [60], op="v_max_f32", upto32=True)
    a("""
    s_lshl_b32 s29, s20, 3
    s_add_u32 s29, s29, %d
    v_lshlrev_b32 v58, 2, v57
    s_mov_b32 exec_lo, 0x80000000
    s_mov_b32 exec_hi, 0x80000000
    buffer_store_dword v60, v58, s[12:15], s29 offen
    """ % NKV)
    a.label("L_k2_end")
    a("s_endpgm")
    return a.text(), 208


L_ACC = 0
L_AF = 18432
L_XB = L_AF + 8192
L_MX = L_XB + 8 * 2064
K3_LDS = L_MX + 1024


def gen_k3():
    a = Asm()
    KR, VR_, QR, S0, O0, WO, XA, AF, ZR, CR = 16, 48, 112, 120, 152, 184, 216, 232, 236, 240
    IDXP, IDXO = 14, 15
    V_LANE16, V_VOFF, V_ACCA, V_AFW, V_XROW = 2, 3, 4, 5, 8
    T0, T1 = 6, 7
    S = lambda t: S0 + 16 * (t & 1)
    O = lambda j: O0 + 16 * (j & 1)
    Q = lambda j: QR + 4 * (j & 1)

    a("s_cmp_ge_u32 s2, 256")
    a("s_cbranch_scc1 L_k3_end")
    a("s_load_dwordx2 s[4:5], s[0:1], %d" % A_X)
    a("s_load_dwordx2 s[6:7], s[0:1], %d" % A_WS)
    wave_id(a, 3, 1)
    a("""
    s_and_b32 s20, s2, 7
    s_lshr_b32 s21, s2, 3
    s_lshl_b32 s20, s20, 5
    s_add_u32 s20, s20, s21
    v_and_b32 v1, 63, v0
    v_lshlrev_b32 v2, 4, v1
    v_and_b32 v6, 15, v0
    v_bfe_u32 v7, v0, 5, 1
    v_lshlrev_b32 v3, 4, v6
    v_lshl_add_u32 v3, v7, 8, v3
    v_lshlrev_b32 v4, 2, v1
    """)
    for r in range(4):
        a("v_mov_b32 v%d, 0" % (ZR + r))
    a("v_lshlrev_b32 v12, 4, v0")
    a("v_lshlrev_b32 v13, 2, v0")
    a("ds_write_b128 v12, %s" % vr(ZR, 4))
    a("ds_write_b128 v12, %s offset:8192" % vr(ZR, 4))
    a("ds_write_b32 v13, v%d offset:16384" % ZR)
    a("v_mov_b32 v12, 0xff800000")
    a("v_and_b32 v13, 0x3fc, v13")
    a("ds_write_b32 v13, v12 offset:%d" % L_MX)
    for r in range(64):
        a("v_mov_b32 v%d, 0x3f803f80" % (VR_ + r))
    for r in range(16):
        a("v_mov_b32 v%d, 0" % (XA + r))
    a("v_mov_b32 v%d, 0xdddd" % IDXP)
    a("v_bfe_u32 v12, v0, 3, 1")
    a("v_mul_u32_u24 v12, 0xaaaa, v12")
    a("v_add_u32 v%d, 0x4444, v12" % IDXO)
    a("""
    v_and_b32 v12, 7, v0
    v_bfe_u32 v13, v0, 3, 2
    v_lshl_add_u32 v12, v13, 4, v12
    v_lshlrev_b32 v12, 4, v12
    v_lshl_add_u32 v12, v7, 3, v12
    s_lshr_b32 s21, s3, 2
    s_lshl_b32 s21, s21, 7
    s_and_b32 s22, s3, 3
    s_lshl_b32 s22, s22, 1
    s_add_u32 s21, s21, s22
    v_add_u32 v5, s21, v12
    s_lshl_b32 s21, s20, 13
    s_add_u32 s21, s21, %d
    s_lshl_b32 s22, s3, 13
    s_add_u32 s23, s22, %d
    s_add_u32 s24, s23, 4096
    s_add_u32 s25, s22, %d
    s_add_u32 s26, s25, 4096
    s_add_u32 s27, s22, %d
    s_lshr_b32 s28, s20, 2
    s_lshl_b32 s28, s28, 6
    s_add_u32 s28, s28, %d
    s_lshl_b32 s29, s20, 3
    s_add_u32 s29, s29, s3
    s_lshl_b32 s30, s29, 10
    v_lshlrev_b32 v12, 3, v1
    s_waitcnt lgkmcnt(0)
    s_load_dwordx16 s[32:47], s[6:7], s28
    """ % (QF, KF, VF, WOF, NQ))
    a.srd(8, 4, 2048 * 1024)
    a.srd(12, 6, WS_SIZE)
    a("s_mov_b32 s31, %d" % NKV)
    a.vmem("buffer_load_dwordx2 v[6:7], v12, s[12:15], s31 offen", "nkv")
    a.vmem("buffer_load_dwordx4 %s, v2, s[12:15], s21 offen" % vr(Q(0), 4), ("q", 0))
    for t in range(8):
        a.vmem("buffer_load_dwordx4 %s, v2, s[12:15], s%d offen offset:%d" % (vr(KR + 4 * t, 4), 23 + (t >> 2), 1024 * (t & 3)), ("k", t))
        a("s_mov_b32 exec_lo, 0xffff")
        a("s_mov_b32 exec_hi, 0xffff")
        for u in range(2):
            a.vmem("buffer_load_dwordx4 %s, v3, s[12:15], s%d offen offset:%d" % (vr(VR_ + 8 * t + 4 * u, 4), 25 + (t >> 2), 1024 * (t & 3) + 512 * u), ("v", t))
        a("s_mov_b64 exec, -1")
    a.vmem("buffer_load_dwordx4 %s, v2, s[12:15], s21 offen offset:1024" % vr(Q(1), 4), ("q", 1))

    def load_wo(j):
        a("s_add_u32 s48, s27, %d" % (65536 * j))
        a("s_add_u32 s49, s48, 4096")
        for f in range(8):
            a.vmem("buffer_load_dwordx4 %s, v2, s[12:15], s%d offen offset:%d" % (vr(WO + 4 * f, 4), 48 + (f >> 2), 1024 * (f & 3)), ("wo", j))
    load_wo(0)
    a.vmem("buffer_load_dwordx4 %s, v2, s[8:11], s30 offen" % vr(V_XROW, 4), "xrow")
    a("s_waitcnt lgkmcnt(0)")
    a("s_barrier")
    for i in range(1, 16):
        a("s_max_u32 s32, s32, s%d" % (32 + i))
    a.wait_vm("nkv")
    a("v_mul_f32 v6, s32, v6")
    a("v_cmp_ge_f32 vcc, %s, v6" % fhex((TBOUND / 1.02) ** 2))
    a("s_mov_b64 s[34:35], vcc")
    a("v_cmp_ge_f32 vcc, %s, v7" % fhex(2.0 ** 80))
    a("s_and_b64 s[34:35], s[34:35], vcc")
    a("v_cmp_le_f32 vcc, %s, v7" % fhex(2.0 ** -80))
    a("s_cmp_eq_u64 vcc, 0")
    a("s_cbranch_scc1 L_k3_slow")
    a("s_cmp_eq_u64 s[34:35], -1")
    if FORCE_SLOW:
        a("s_branch L_k3_slow")
    a("s_cbranch_scc0 L_k3_slow")
    vm_entry = list(a.vm)

    def qk(t, slow):
        j, tt = t >> 3, t & 7
        a.wait_vm(("q", j))
        a.wait_vm(("k", tt))
        a("v_mfma_f32_32x32x16_bf16 %s, %s, %s, %s" % (vr(S(t), 16), vr(KR + 4 * tt, 4), vr(Q(j), 4), vr(CR, 16) if slow else "0"))

    def pv(t, u):
        j, tt = t >> 3, t & 7
        a.wait_vm(("v", tt))
        a("v_smfmac_f32_32x32x32_bf16 %s, %s, %s, v%d" % (vr(O(j), 16), vr(VR_ + 8 * tt + 4 * u, 4), vr(S(t) + 8 * u, 8), IDXP))

    def zero_o(j):
        a("v_mfma_f32_32x32x16_bf16 %s, %s, %s, 0" % (vr(O(j), 16), vr(ZR, 4), vr(ZR, 4)))

    def flush(j):
        for r in range(9):
            a.ds("ds_add_f32 v%d, v%d offset:%d" % (V_ACCA, O(j) + r, L_ACC + 2304 * j + 256 * r), "add")

    def norm_read(j):
        a.wait_lg_all()
        a("s_barrier")
        a.ds("ds_read_b32 v%d, v13 offset:%d" % (T0, L_ACC + 2304 * j), "nr")
        a.ds("ds_read_b32 v%d, v%d offset:%d" % (T1, V_ACCA, L_ACC + 2304 * j + 2048), "nr")

    def norm_a(j):
        a.wait_lg_all()
        a("v_rcp_f32 v%d, v%d" % (T1, T1))

    def norm_b(j):
        a("v_mul_f32 v%d, v%d, v%d" % (T0, T0, T1))
        a("v_cvt_pk_bf16_f32 v%d, v%d, v%d" % (T0, T0, T0))
        a.ds("ds_write_b16 v%d, v%d offset:%d" % (V_AFW, T0, L_AF + 1024 * j), "afw")

    def af_read(j):
        a.wait_lg_all()
        a("s_barrier")
        a.ds("ds_read_b128 %s, v2 offset:%d" % (vr(AF, 4), L_AF + 1024 * j), "af")

    def wo_mm(j, t4):
        if t4 == 0:
            a.wait_lg_all()
            a.wait_vm(("wo", j))
        a("v_smfmac_f32_16x16x64_bf16 %s, %s, %s, v%d" % (vr(XA + 4 * t4, 4), vr(AF, 4), vr(WO + 8 * t4, 8), IDXO))

    def load_c(j):
        a.ds("ds_read_b32 v%d, v12 offset:%d" % (CR, L_MX + 128 * j), "mx")
        a.wait_lg_all()
        a("v_sub_f32 v%d, 0, v%d" % (CR, CR))
        for r in range(1, 16):
            a("v_mov_b32 v%d, v%d" % (CR + r, CR))
        a("s_nop 1")

    def main(slow):
        a("s_lshl_b32 s50, s3, 8")
        a("v_add_u32 v13, s50, v4")
        if slow:
            load_c(0)
        zero_o(0)
        qk(0, slow)
        a("s_nop 11")
        for t in range(64):
            j, tt = t >> 3, t & 7
            ev = {}

            def at(p, f):
                ev.setdefault(p, []).append(f)
            if t > 0:
                at(2, lambda: pv(t - 1, 1))
            if t + 1 < 64:
                if slow and tt == 7:
                    at(5, lambda: load_c(j + 1))
                at(5, lambda: qk(t + 1, slow))
            at(11, lambda: pv(t, 0))
            if tt == 7 and j < 7:
                at(14, lambda: zero_o(j + 1))
            if tt == 0 and j + 1 < 8 and j >= 1:
                at(8, lambda: a.vmem("buffer_load_dwordx4 %s, v2, s[12:15], s%d offen offset:%d" % (
                    vr(Q(j + 1), 4), 21 if j + 1 < 4 else 22, 1024 * ((j + 1) & 3)), ("q", j + 1)))
            if j >= 1:
                g = j - 1
                if tt == 1:
                    at(0, lambda: flush(g))
                if tt == 2:
                    at(8, lambda: norm_read(g))
                if tt == 3:
                    at(0, lambda: norm_a(g))
                    at(1, lambda: norm_b(g))
                if tt == 4:
                    at(8, lambda: af_read(g))
                if tt == 5:
                    at(0, lambda: wo_mm(g, 0))
                    at(8, lambda: wo_mm(g, 1))
                    at(14, lambda: wo_mm(g, 2))
                if tt == 6:
                    at(0, lambda: wo_mm(g, 3))
                    at(8, lambda: load_wo(g + 1))
            for p in range(16):
                for f in ev.get(p, []):
                    f()
                a("v_exp_f32 v%d, v%d" % (S(t) + p, S(t) + p))
        a("s_nop 1")
        pv(63, 1)

    a("s_add_u32 s22, s21, 4096")
    main(False)
    vm_exit = list(a.vm)
    a.label("L_k3_tail")
    a("v_lshlrev_b32 v12, 5, v1")
    a("s_mov_b32 s31, %d" % (MOD + 4096))
    for i, off in enumerate((0, 2048, 4096)):
        if off == 4096:
            a("s_mov_b32 s31, %d" % (MOD + 8192))
            off = 0
        a.vmem("buffer_load_dwordx4 %s, v12, s[12:15], s31 offen offset:%d" % (vr(KR + 8 * i, 4), off), "mod")
        a.vmem("buffer_load_dwordx4 %s, v12, s[12:15], s31 offen offset:%d" % (vr(KR + 8 * i + 4, 4), off + 16), "mod")
    a("s_nop 3")
    flush(7)
    norm_read(7)
    norm_a(7)
    a("s_nop 0")
    norm_b(7)
    af_read(7)
    for t4 in range(4):
        wo_mm(7, t4)
    a("""
    v_and_b32 v6, 15, v0
    v_bfe_u32 v7, v0, 5, 1
    v_lshl_add_u32 v6, v7, 4, v6
    v_lshlrev_b32 v6, 2, v6
    v_bfe_u32 v7, v0, 4, 1
    v_mul_u32_u24 v7, %d, v7
    v_add_u32 v6, v6, v7
    v_add_u32 v6, s50, v6
    s_nop 2
    """ % (4 * 2064))
    for p in range(2):
        for r in range(4):
            a("v_permlane32_swap_b32 v%d, v%d" % (XA + 8 * p + r, XA + 8 * p + 4 + r))
    for p in range(2):
        for r in range(4):
            a("v_add_f32 v%d, v%d, v%d" % (XA + 8 * p + r, XA + 8 * p + r, XA + 8 * p + 4 + r))
    for p in range(2):
        for r in range(4):
            a.ds("ds_write_b32 v6, v%d offset:%d" % (XA + 8 * p + r, L_XB + 2064 * r + 128 * p))
    a("s_mul_i32 s50, s3, 2064")
    a("v_add_u32 v6, s50, v12")
    a.wait_lg_all()
    a("s_barrier")
    A_ = S0
    X_ = S0 + 8
    a("ds_read_b128 %s, v6 offset:%d" % (vr(A_, 4), L_XB))
    a("ds_read_b128 %s, v6 offset:%d" % (vr(A_ + 4, 4), L_XB + 16))
    a.wait_vm_all()
    for p in range(4):
        a("v_lshlrev_b32 v%d, 16, v%d" % (X_ + 2 * p, V_XROW + p))
        a("v_and_b32 v%d, 0xffff0000, v%d" % (X_ + 2 * p + 1, V_XROW + p))
    a("s_waitcnt lgkmcnt(0)")
    GA, SB, G2 = KR, KR + 8, KR + 16
    for e in range(8):
        a("v_fma_f32 v%d, v%d, v%d, v%d" % (A_ + e, A_ + e, GA + e, X_ + e))
    for p in range(4):
        a("v_cvt_pk_bf16_f32 v%d, v%d, v%d" % (V_XROW + p, A_ + 2 * p, A_ + 2 * p + 1))
    a("s_add_u32 s31, s30, %d" % X1)
    a("buffer_store_dwordx4 %s, v2, s[12:15], s31 offen" % vr(V_XROW, 4))
    for p in range(4):
        a("v_lshlrev_b32 v%d, 16, v%d" % (A_ + 2 * p, V_XROW + p))
        a("v_and_b32 v%d, 0xffff0000, v%d" % (A_ + 2 * p + 1, V_XROW + p))
    a("v_add_f32 v6, v%d, v%d" % (A_, A_ + 1))
    a("v_add_f32 v7, v%d, v%d" % (A_ + 2, A_ + 3))
    a("v_add_f32 v12, v%d, v%d" % (A_ + 4, A_ + 5))
    a("v_add_f32 v13, v%d, v%d" % (A_ + 6, A_ + 7))
    a("v_add_f32 v6, v6, v7")
    a("v_add_f32 v12, v12, v13")
    a("v_add_f32 v6, v6, v12")
    dpp_reduce63(a, [6])
    a("v_mul_f32 v6, %s, v6" % fhex(1.0 / 512))
    a("s_nop 0")
    a("v_readlane_b32 s32, v6, 63")
    a("s_nop 1")
    for e in range(8):
        a("v_subrev_f32 v%d, s32, v%d" % (X_ + e, A_ + e))
    a("v_mul_f32 v7, v%d, v%d" % (X_, X_))
    a("v_mul_f32 v12, v%d, v%d" % (X_ + 1, X_ + 1))
    for e in range(2, 8, 2):
        a("v_fmac_f32 v7, v%d, v%d" % (X_ + e, X_ + e))
        a("v_fmac_f32 v12, v%d, v%d" % (X_ + e + 1, X_ + e + 1))
    a("v_add_f32 v7, v7, v12")
    dpp_reduce63(a, [7])
    a("v_mul_f32 v7, %s, v7" % fhex(1.0 / 512))
    bf16_round(a, 6, 6)
    bf16_round(a, 7, 7)
    a("v_add_f32 v7, %s, v7" % fhex(1e-5))
    bf16_round(a, 7, 7)
    a("v_sqrt_f32 v7, v7")
    a("s_nop 0")
    bf16_round(a, 7, 7)
    a("v_rcp_f32 v7, v7")
    a("s_nop 0")
    a("v_mul_f32 v6, v6, v7")
    a("v_sub_f32 v6, 0, v6")
    a("v_readlane_b32 s32, v7, 63")
    a("v_readlane_b32 s33, v6, 63")
    a("""
    v_lshrrev_b32 v6, 1, v1
    v_lshlrev_b32 v6, 10, v6
    v_and_b32 v7, 1, v1
    v_lshl_add_u32 v6, v7, 9, v6
    s_lshr_b32 s31, s29, 5
    s_lshl_b32 s31, s31, 15
    s_and_b32 s34, s29, 31
    s_lshl_b32 s34, s34, 4
    s_add_u32 s31, s31, s34
    s_add_u32 s31, s31, %d
    """ % H2F)
    for p in range(4):
        t = A_ + 2 * p
        a("v_pk_fma_f32 %s, %s, s[32:33], s[32:33] op_sel:[0,0,1] op_sel_hi:[1,0,1]" % (vr(t, 2), vr(t, 2)))
        a("v_pk_fma_f32 %s, %s, %s, %s" % (vr(t, 2), vr(t, 2), vr(G2 + 2 * p, 2), vr(SB + 2 * p, 2)))
        a("v_cvt_pk_bf16_f32 v%d, v%d, v%d" % (X_ + p, t, t + 1))
    a("buffer_store_dwordx4 %s, v6, s[12:15], s31 offen" % vr(X_, 4))
    a.label("L_k3_end")
    a("s_endpgm")

    a.label("L_k3_slow")
    a.vm = list(vm_entry)
    a.lg = []
    a.wait_vm_all()
    a("s_add_u32 s22, s21, 4096")
    a("v_and_b32 v12, 31, v0")
    a("v_lshlrev_b32 v12, 2, v12")
    for j in range(8):
        a("buffer_load_dwordx4 %s, v2, s[12:15], s%d offen offset:%d" % (vr(AF, 4), 21 if j < 4 else 22, 1024 * (j & 3)))
        a("v_mov_b32 v6, 0xff800000")
        a("s_waitcnt vmcnt(0)")
        for tt in range(8):
            a("v_mfma_f32_32x32x16_bf16 %s, %s, %s, 0" % (vr(S0, 16), vr(KR + 4 * tt, 4), vr(AF, 4)))
            a("s_nop 11")
            for r in range(0, 16, 2):
                a("v_max3_f32 v6, v6, v%d, v%d" % (S0 + r, S0 + r + 1))
        a("ds_max_f32 v12, v6 offset:%d" % (L_MX + 128 * j))
    a("s_waitcnt lgkmcnt(0)")
    a("s_barrier")
    main(True)
    assert a.vm == vm_exit, (a.vm, vm_exit)
    a("s_branch L_k3_tail")
    return a.text(), 256


def gen_k4():
    a = Asm()
    H, ACC, R = 8, 136, 184
    a("s_cmp_ge_u32 s2, 240")
    a("s_cbranch_scc1 L_k4_end")
    a("s_load_dwordx2 s[6:7], s[0:1], %d" % A_WS)
    wave_id(a, 3, 1)
    a("""
    s_and_b32 s20, s2, 7
    s_lshr_b32 s21, s2, 3
    s_cmp_ge_u32 s21, 15
    s_cselect_b32 s22, 4, 0
    s_cselect_b32 s23, 15, 0
    s_sub_u32 s21, s21, s23
    s_lshl_b32 s20, s20, 3
    s_add_u32 s20, s20, s22
    s_add_u32 s20, s20, s3
    s_mul_i32 s21, s21, 3
    v_and_b32 v1, 63, v0
    v_lshlrev_b32 v2, 4, v1
    s_lshl_b32 s24, s20, 15
    s_add_u32 s24, s24, %d
    s_lshl_b32 s25, s21, 15
    s_lshl_b32 s26, s3, 11
    s_add_u32 s25, s25, s26
    s_waitcnt lgkmcnt(0)
    """ % H2F)
    a.srd(12, 6, WS_SIZE)
    a.srd_off(8, 6, W1F, 43 * 32768)
    for s in range(4):
        for c in range(3):
            a("s_add_u32 m0, s26, %d" % (c * 32768 + s * 8192))
            a("s_add_u32 s27, s25, %d" % (c * 32768 + s * 8192))
            a.vmem("buffer_load_dwordx4 v2, s[8:11], s27 offen lds", ("st", s))
            a.vmem("buffer_load_dwordx4 v2, s[8:11], s27 offen offset:1024 lds", ("st", s))
        for hh in range(2):
            a("s_add_u32 s27, s24, %d" % (s * 8192 + hh * 4096))
            for q in range(4):
                a.vmem("buffer_load_dwordx4 %s, v2, s[12:15], s27 offen offset:%d" % (vr(H + 32 * s + 16 * hh + 4 * q, 4), 1024 * q), ("st", s))
    a("v_add_u32 v3, 0x10000, v2")
    seq = [(s, k, c) for s in range(4) for k in range(8) for c in range(3)]

    def rd(n):
        s, k, c = seq[n]
        off = c * 32768 + (8 * s + k) * 1024
        base = 2 if off < 65536 else 3
        a.ds("ds_read_b128 %s, v%d offset:%d" % (vr(R + 4 * (n & 7), 4), base, off & 0xffff), ("r", n))
    nread = 0
    for n, (s, k, c) in enumerate(seq):
        if k == 0 and c == 0:
            a.wait_vm(("st", s))
            a("s_barrier")
        while nread < len(seq) and nread < n + 7 and seq[nread][0] == s:
            rd(nread)
            nread += 1
        a.wait_lg(("r", n))
        a("v_mfma_f32_32x32x16_bf16 %s, %s, %s, %s" % (vr(ACC + 16 * c, 16), vr(R + 4 * (n & 7), 4), vr(H + 4 * (8 * s + k), 4),
                                                       "0" if (s == 0 and k == 0) else vr(ACC + 16 * c, 16)))
    a("s_mul_i32 s27, s20, %d" % (86 * 1024))
    a("s_lshl_b32 s28, s21, 11")
    a("s_add_u32 s27, s27, s28")
    a("s_add_u32 s27, s27, %d" % GF)
    a("s_mov_b32 s30, %s" % fhex(-LOG2E))
    a("s_mov_b32 s31, s30")
    a("s_nop 6")
    for c in range(3):
        if c == 1:
            a("s_cmp_eq_u32 s21, 42")
            a("s_cbranch_scc1 L_k4_end")
        y = ACC + 16 * c
        T = H
        for r in range(0, 16, 2):
            a("v_pk_mul_f32 %s, %s, s[30:31]" % (vr(T + r, 2), vr(y + r, 2)))
        for r in range(16):
            a("v_exp_f32 v%d, v%d" % (T + r, T + r))
        for r in range(0, 16, 2):
            a("v_pk_add_f32 %s, %s, 1.0 op_sel_hi:[1,0]" % (vr(T + r, 2), vr(T + r, 2)))
        for r in range(16):
            a("v_rcp_f32 v%d, v%d" % (T + r, T + r))
        for r in range(0, 16, 2):
            a("v_pk_mul_f32 %s, %s, %s" % (vr(T + r, 2), vr(T + r, 2), vr(y + r, 2)))
        P = H + 16 + 8 * c
        for r in range(0, 16, 2):
            a("v_cvt_pk_bf16_f32 v%d, v%d, v%d" % (P + r // 2, T + r, T + r + 1))
        if c == 2:
            a("s_add_u32 s27, s27, 4096")
        off = 2048 * (c & 1)
        a("buffer_store_dwordx4 %s, v2, s[12:15], s27 offen offset:%d" % (vr(P, 4), off))
        a("buffer_store_dwordx4 %s, v2, s[12:15], s27 offen offset:%d" % (vr(P + 4, 4), off + 1024))
    a.label("L_k4_end")
    a("s_endpgm")
    return a.text(), 216


def gen_k5():
    a = Asm()
    ACC, R, DEPTH = 16, 80, 10
    NS = 22
    a("s_cmp_ge_u32 s2, 256")
    a("s_cbranch_scc1 L_k5_end")
    a("s_load_dwordx2 s[4:5], s[0:1], %d" % A_OUT)
    a("s_load_dwordx2 s[6:7], s[0:1], %d" % A_WS)
    wave_id(a, 3, 1)
    a("""
    s_and_b32 s20, s2, 7
    s_lshr_b32 s21, s2, 3
    s_lshr_b32 s22, s21, 3
    s_and_b32 s21, s21, 7
    s_lshl_b32 s20, s20, 3
    s_lshl_b32 s22, s22, 1
    s_add_u32 s20, s20, s22
    s_lshl_b32 s21, s21, 1
    s_mul_i32 s22, s3, 22
    s_cmp_eq_u32 s3, 3
    s_cselect_b32 s23, 1, 0
    s_sub_u32 s22, s22, s23
    s_lshl_b32 s22, s22, 10
    s_mul_i32 s24, s20, %d
    s_add_u32 s24, s24, s22
    s_add_u32 s24, s24, %d
    s_add_u32 s25, s24, %d
    s_mul_i32 s26, s21, %d
    s_add_u32 s26, s26, s22
    s_add_u32 s26, s26, %d
    s_add_u32 s27, s26, %d
    v_and_b32 v1, 63, v0
    v_lshlrev_b32 v2, 4, v1
    s_waitcnt lgkmcnt(0)
    """ % (86 * 1024, GF, 86 * 1024, 86 * 1024, W2F, 86 * 1024))
    a.srd(12, 6, WS_SIZE)
    a.srd(8, 4, 2048 * 1024)

    def ld(k):
        b = R + 16 * (k % DEPTH)
        if k > 0 and k % 4 == 0:
            for s in range(24, 28):
                a("s_add_u32 s%d, s%d, 4096" % (s, s))
        if k == NS - 1:
            a("s_cmp_ge_u32 s3, 2")
            for s in range(24, 28):
                a("s_cselect_b32 s%d, 0x%x, s%d" % (s, WS_SIZE, s))
        for i in range(4):
            a.vmem("buffer_load_dwordx4 %s, v2, s[12:15], s%d offen offset:%d" % (vr(b + 4 * i, 4), 24 + i, 1024 * (k & 3)), ("k", k))
    for k in range(DEPTH):
        ld(k)
    a("""
    s_lshr_b32 s28, s3, 1
    s_add_u32 s28, s28, s20
    s_and_b32 s29, s3, 1
    s_add_u32 s29, s29, s21
    s_lshl_b32 s30, s28, 15
    s_lshl_b32 s31, s29, 6
    s_add_u32 s30, s30, s31
    s_add_u32 s31, s30, %d
    s_lshl_b32 s32, s29, 7
    s_add_u32 s32, s32, %d
    v_and_b32 v3, 31, v0
    v_lshlrev_b32 v3, 10, v3
    v_bfe_u32 v4, v0, 5, 1
    v_lshl_add_u32 v3, v4, 3, v3
    v_lshlrev_b32 v4, 4, v4
    """ % (X1, MOD + 5 * 2048))
    for k in range(NS):
        a.wait_vm(("k", k))
        b = R + 16 * (k % DEPTH)
        for rt in range(2):
            for ct in range(2):
                acc = ACC + 16 * (2 * rt + ct)
                a("v_mfma_f32_32x32x16_bf16 %s, %s, %s, %s" % (vr(acc, 16), vr(b + 8 + 4 * ct, 4), vr(b + 4 * rt, 4), "0" if k == 0 else vr(acc, 16)))
        if k + DEPTH < NS:
            ld(k + DEPTH)
        if k == NS - DEPTH:
            for q in range(4):
                a.vmem("buffer_load_dwordx2 %s, v3, s[12:15], s31 offen offset:%d" % (vr(8 + 2 * q, 2), 16 * q), "ep")
            for q in range(4):
                a.vmem("buffer_load_dwordx4 %s, v4, s[12:15], s32 offen offset:%d" % (vr(240 + 4 * q, 4), 32 * q), "ep")
    a("s_lshl_b32 s33, s3, 12")
    a("v_add_u32 v5, s33, v2")
    a("s_lshl_b32 s33, s3, 14")
    a("v_add_u32 v6, s33, v2")
    a("s_nop 8")
    for t in range(4):
        for q in range(4):
            a("ds_write_b128 v5, %s offset:%d" % (vr(ACC + 16 * t + 4 * q, 4), 16384 * t + 1024 * q))
    a("s_waitcnt lgkmcnt(0)")
    a("s_barrier")
    for w in range(4):
        for q in range(4):
            a("ds_read_b128 %s, v6 offset:%d" % (vr(ACC + 16 * w + 4 * q, 4), 4096 * w + 1024 * q))
    a("s_waitcnt lgkmcnt(0)")
    for r in range(0, 16, 2):
        a("v_pk_add_f32 %s, %s, %s" % (vr(ACC + r, 2), vr(ACC + r, 2), vr(ACC + 16 + r, 2)))
        a("v_pk_add_f32 %s, %s, %s" % (vr(ACC + 32 + r, 2), vr(ACC + 32 + r, 2), vr(ACC + 48 + r, 2)))
    for r in range(0, 16, 2):
        a("v_pk_add_f32 %s, %s, %s" % (vr(ACC + r, 2), vr(ACC + r, 2), vr(ACC + 32 + r, 2)))
    a.wait_vm_all()
    for p in range(8):
        a("v_lshlrev_b32 v%d, 16, v%d" % (ACC + 16 + 2 * p, 8 + p))
        a("v_and_b32 v%d, 0xffff0000, v%d" % (ACC + 17 + 2 * p, 8 + p))
    for r in range(0, 16, 2):
        a("v_pk_fma_f32 %s, %s, %s, %s" % (vr(ACC + r, 2), vr(ACC + r, 2), vr(240 + r, 2), vr(ACC + 16 + r, 2)))
    for p in range(8):
        a("v_cvt_pk_bf16_f32 v%d, v%d, v%d" % (8 + p, ACC + 2 * p, ACC + 2 * p + 1))
    for q in range(4):
        a("buffer_store_dwordx2 %s, v3, s[8:11], s30 offen offset:%d" % (vr(8 + 2 * q, 2), 16 * q))
    a.label("L_k5_end")
    a("s_endpgm")
    return a.text(), 256


def main():
    ks = [("k1_kernel", gen_k1, (504, 256, 1024)),
          ("k2_kernel", gen_k2, (256, 320, 32768)),
          ("k3_kernel", gen_k3, (256, 512, K3_LDS)),
          ("k4_kernel", gen_k4, (240, 256, 98304)),
          ("k5_kernel", gen_k5, (256, 256, 65536))]
    out = "; adaLN + MQA attention + SiLU MLP block, gfx950 (generated by gen/gen.py)\n"
    for n, g, (gx, bx, lds) in ks:
        out += "; @launch kernel=%s grid=(%d,1,1) block=(%d,1,1) lds=%d\n" % (n, gx, bx, lds)
    out += '.amdgcn_target "amdgcn-amd-amdhsa--gfx950"\n.text\n'
    descs = ""
    for n, g, _ in ks:
        body, vg = g()
        out += kernel_header(n) + body
        descs += kernel_desc(n, vg)
    out += '.section .rodata,"a"\n' + descs
    path = sys.argv[1] if len(sys.argv) > 1 else "cdna_kernels/%s.s" % NAME
    open(path, "w").write(out)
    print("wrote", path, len(out), "bytes")


if __name__ == "__main__":
    main()
```

```python
import sys, os, math
sys.path.insert(0, os.path.dirname(os.path.abspath(__file__)))
from asmlib import *

NAME = "adaLN_cond__grouped_kv_mqa__dense_activation_silu__prompt"
A_X, A_WQ, A_WK, A_WV, A_WO, A_BX, A_W1, A_W2, A_C, A_WMOD, A_OUT, A_DBG, A_WS = [8 * i for i in range(13)]
MOD = 0x000000
STAT = 0x004000
NQ = 0x008000
NKV = 0x009000
WQF = 0x010000
WKVF = 0x090000
WOF = 0x0A0000
W1F = 0x120000
W2F = 0x280000
QF = 0x400000
KF = 0x600000
VF = 0x610000
X1 = 0x700000
H2F = 0x900000
GF = 0xB00000
WS_SIZE = 0x1100000
LOG2E = 1.4426950408889634
QSCALE = 0.25 * LOG2E
TBOUND = 60.0

FORCE_SLOW = os.environ.get("FORCE_SLOW", "0") == "1"


def bf16_round(a, dst, src, tmp=None):
    a("v_cvt_pk_bf16_f32 v%d, v%d, v%d" % (dst, src, src))
    a("v_lshlrev_b32 v%d, 16, v%d" % (dst, dst))


def wave_id(a, sdst, vtmp):
    a("v_lshrrev_b32 v%d, 6, v0" % vtmp)
    a("s_nop 0")
    a("v_readfirstlane_b32 s%d, v%d" % (sdst, vtmp))


K1_MOD, K1_STAT, K1_WQ, K1_WKV, K1_WO, K1_W1, K1_W2 = 0, 192, 256, 288, 296, 328, 416
K1_END = 504


def shuffle_body(a, lbl, karg, src_bytes, rs, lane_row, rowoff, dst, nks, decode, colbytes, nfr=4, frag_rows=16,
                 lanecol_mask=31, dst_calc=None):
    a.label(lbl)
    a("s_load_dwordx2 s[4:5], s[0:1], %d" % karg)
    decode(a)
    a("v_and_b32 v1, %d, v0" % lanecol_mask)
    a("v_lshlrev_b32 v1, 1, v1")
    lane_row(a)
    a("s_mov_b32 s33, %d" % rs)
    a("v_mul_lo_u32 v2, v2, s33")
    a("v_add_u32 v1, v1, v2")
    a("v_and_b32 v3, 63, v0")
    a("v_lshlrev_b32 v3, 4, v3")
    a("s_waitcnt lgkmcnt(0)")
    a.srd(8, 4, src_bytes)
    a.srd(12, 6, WS_SIZE)
    for f in range(nfr):
        for e in range(8):
            a("s_add_u32 s34, s30, %d" % (rowoff(f, e)))
            a.vmem("buffer_load_ushort v%d, v1, s[8:11], s34 offen" % (8 + 8 * f + e), ("f", f))
    for f in range(nfr):
        a.wait_vm(("f", f))
        for p in range(4):
            a("v_lshl_or_b32 v%d, v%d, 16, v%d" % (48 + 4 * f + p, 8 + 8 * f + 2 * p + 1, 8 + 8 * f + 2 * p))
    for f in range(nfr):
        if dst_calc:
            dst_calc(a, f)
        a("buffer_store_dwordx4 %s, v3, s[12:15], s31 offen offset:%d" % (vr(48 + 4 * f, 4), 1024 * f))
    a.vm = []
    a("s_endpgm")


def gen_k1():
    a = Asm()
    a("s_load_dwordx2 s[6:7], s[0:1], %d" % A_WS)
    wave_id(a, 3, 1)
    for lim, lbl in ((K1_STAT, "L_k1_mod"), (K1_WQ, "L_k1_stat"), (K1_WKV, "L_k1_wq"), (K1_WO, "L_k1_wkv"),
                     (K1_W1, "L_k1_wo"), (K1_W2, "L_k1_w1"), (K1_END, "L_k1_w2")):
        a("s_cmp_lt_u32 s2, %d" % lim)
        a("s_cbranch_scc1 %s" % lbl)
    a.label("L_k1_end")
    a("s_endpgm")

    a.label("L_k1_mod")
    a("s_load_dwordx4 s[16:19], s[0:1], %d" % A_C)
    a("""
    s_and_b32 s20, s2, 7
    s_lshr_b32 s21, s2, 3
    s_mul_i32 s20, s20, 6
    s_lshr_b32 s22, s21, 2
    s_add_u32 s20, s20, s22
    s_lshl_b32 s20, s20, 2
    s_and_b32 s21, s21, 3
    s_add_u32 s20, s20, s21
    s_lshl_b32 s21, s20, 5
    v_lshrrev_b32 v1, 1, v0
    v_mul_u32_u24 v2, 6144, v1
    v_and_b32 v3, 1, v0
    v_lshl_add_u32 v2, v3, 4, v2
    v_lshlrev_b32 v1, 1, v1
    s_waitcnt lgkmcnt(0)
    """)
    a.srd(8, 18, 512 * 6144)
    a.srd(12, 16, 1024)
    a.srd(24, 6, WS_SIZE)
    for i in range(4):
        a.vmem("buffer_load_ushort v%d, v1, s[12:15], 0 offen offset:%d" % (4 + i, 256 * i), "c")
    for i in range(4):
        a("s_add_u32 s22, s21, %d" % (i * 128 * 6144))
        a.vmem("buffer_load_dwordx4 %s, v2, s[8:11], s22 offen" % vr(8 + 4 * i, 4), ("w", i))
    a.wait_vm("c")
    a("s_mov_b32 s23, %s" % fhex(-LOG2E))
    for i in range(4):
        a("v_lshlrev_b32 v%d, 16, v%d" % (4 + i, 4 + i))
    for i in range(4):
        a("v_mul_f32 v%d, s23, v%d" % (24 + i, 4 + i))
    for i in range(4):
        a("v_exp_f32 v%d, v%d" % (24 + i, 24 + i))
    a("s_nop 0")
    for i in range(4):
        a("v_add_f32 v%d, 1.0, v%d" % (24 + i, 24 + i))
    for i in range(4):
        a("v_rcp_f32 v%d, v%d" % (24 + i, 24 + i))
    a("s_nop 0")
    for i in range(4):
        a("v_mul_f32 v%d, v%d, v%d" % (4 + i, 4 + i, 24 + i))
    for i in range(4):
        bf16_round(a, 4 + i, 4 + i)
    for i in range(4):
        a.wait_vm(("w", i))
        for p in range(4):
            a("v_lshlrev_b32 v28, 16, v%d" % (8 + 4 * i + p))
            a("v_and_b32 v29, 0xffff0000, v%d" % (8 + 4 * i + p))
            if i == 0:
                a("v_mul_f32 v%d, v28, v4" % (32 + 2 * p))
                a("v_mul_f32 v%d, v29, v4" % (33 + 2 * p))
            else:
                a("v_fmac_f32 v%d, v28, v%d" % (32 + 2 * p, 4 + i))
                a("v_fmac_f32 v%d, v29, v%d" % (33 + 2 * p, 4 + i))
    a("s_nop 1")
    for sh in (2, 4, 8):
        for j in range(8):
            a("v_add_f32_dpp v%d, v%d, v%d row_ror:%d row_mask:0xf bank_mask:0xf" % (32 + j, 32 + j, 32 + j, sh))
    a("""
    v_lshrrev_b32 v1, 4, v0
    v_lshlrev_b32 v1, 2, v1
    v_lshl_add_u32 v1, v3, 9, v1
    v_and_b32 v2, 15, v0
    v_cmp_gt_u32 vcc, 2, v2
    s_and_saveexec_b64 s[28:29], vcc
    """)
    for j in range(8):
        a("ds_write_b32 v1, v%d offset:%d" % (32 + j, 64 * j))
    a("""
    s_mov_b64 exec, s[28:29]
    s_waitcnt lgkmcnt(0)
    s_barrier
    s_cmp_lg_u32 s3, 0
    s_cbranch_scc1 L_k1_end
    v_and_b32 v2, 15, v0
    v_lshlrev_b32 v1, 6, v2
    ds_read_b128 v[8:11], v1
    ds_read_b128 v[12:15], v1 offset:16
    ds_read_b128 v[16:19], v1 offset:32
    ds_read_b128 v[20:23], v1 offset:48
    s_waitcnt lgkmcnt(0)
    """)
    for st in (8, 4, 2, 1):
        for j in range(st):
            a("v_add_f32 v%d, v%d, v%d" % (8 + j, 8 + j, 8 + j + st))
    bf16_round(a, 8, 8)
    a("""
    s_lshr_b32 s22, s20, 5
    s_cmp_eq_u32 s22, 1
    s_cselect_b32 s23, 1.0, 0
    s_cmp_eq_u32 s22, 4
    s_cselect_b32 s23, 1.0, s23
    v_add_f32 v8, s23, v8
    """)
    bf16_round(a, 8, 8)
    a("""
    s_lshl_b32 s22, s20, 6
    v_lshlrev_b32 v1, 2, v2
    v_cmp_gt_u32 vcc, 16, v0
    s_and_saveexec_b64 s[28:29], vcc
    buffer_store_dword v8, v1, s[24:27], s22 offen offset:%d
    s_endpgm
    """ % MOD)
    a.vm = []

    a.label("L_k1_stat")
    a("s_load_dwordx2 s[4:5], s[0:1], %d" % A_X)
    a("""
    s_sub_u32 s20, s2, %d
    s_and_b32 s21, s20, 7
    s_lshr_b32 s20, s20, 3
    s_lshl_b32 s21, s21, 8
    s_lshl_b32 s20, s20, 5
    s_add_u32 s20, s20, s21
    s_lshl_b32 s21, s3, 3
    s_add_u32 s20, s20, s21
    s_lshl_b32 s21, s20, 10
    s_add_u32 s22, s21, 4096
    v_and_b32 v1, 63, v0
    v_lshlrev_b32 v2, 4, v1
    s_waitcnt lgkmcnt(0)
    """ % K1_STAT)
    a.srd(8, 4, 2048 * 1024)
    a.srd(12, 6, WS_SIZE)
    for r in range(8):
        a.vmem("buffer_load_dwordx4 %s, v2, s[8:11], s%d offen offset:%d" % (vr(8 + 4 * r, 4), 21 + (r >> 2), 1024 * (r & 3)), ("x", r))
    U = 48
    for r in range(8):
        a.wait_vm(("x", r))
        for p in range(4):
            a("v_lshlrev_b32 v%d, 16, v%d" % (U + 8 * r + 2 * p, 8 + 4 * r + p))
            a("v_and_b32 v%d, 0xffff0000, v%d" % (U + 8 * r + 2 * p + 1, 8 + 4 * r + p))
        a("v_add_f32 v%d, v%d, v%d" % (112 + r, U + 8 * r, U + 8 * r + 1))
        for e in range(2, 8):
            a("v_add_f32 v%d, v%d, v%d" % (112 + r, 112 + r, U + 8 * r + e))
    a("s_nop 1")
    dpp_reduce63(a, [112 + r for r in range(8)])
    for r in range(8):
        a("v_mul_f32 v%d, %s, v%d" % (112 + r, fhex(1.0 / 512), 112 + r))
    for r in range(8):
        a("v_readlane_b32 s%d, v%d, 63" % (32 + r, 112 + r))
    a("s_nop 1")
    for r in range(8):
        for e in range(8):
            a("v_subrev_f32 v%d, s%d, v%d" % (U + 8 * r + e, 32 + r, U + 8 * r + e))
        a("v_mul_f32 v%d, v%d, v%d" % (112 + r, U + 8 * r, U + 8 * r))
        for e in range(1, 8):
            a("v_fmac_f32 v%d, v%d, v%d" % (112 + r, U + 8 * r + e, U + 8 * r + e))
    a("s_nop 1")
    dpp_reduce63(a, [112 + r for r in range(8)])
    a("s_nop 0")
    for r in range(8):
        a("v_readlane_b32 s%d, v%d, 63" % (40 + r, 112 + r))
    a("v_mov_b32 v4, 0")
    a("v_mov_b32 v5, 1.0")
    a("s_nop 1")
    for r in range(8):
        a("v_writelane_b32 v4, s%d, %d" % (32 + r, r))
        a("v_writelane_b32 v5, s%d, %d" % (40 + r, r))
    a("v_mul_f32 v5, %s, v5" % fhex(1.0 / 512))
    bf16_round(a, 4, 4)
    bf16_round(a, 5, 5)
    a("v_add_f32 v5, %s, v5" % fhex(1e-5))
    bf16_round(a, 5, 5)
    a("v_sqrt_f32 v5, v5")
    a("s_nop 0")
    bf16_round(a, 5, 5)
    a("v_rcp_f32 v6, v5")
    a("s_nop 0")
    a("v_mul_f32 v7, v4, v6")
    a("v_sub_f32 v7, 0, v7")
    a("""
    s_lshl_b32 s21, s20, 3
    s_add_u32 s21, s21, %d
    v_lshlrev_b32 v2, 3, v1
    v_cmp_gt_u32 vcc, 8, v1
    s_and_saveexec_b64 s[28:29], vcc
    buffer_store_dwordx2 v[6:7], v2, s[12:15], s21 offen
    s_endpgm
    """ % STAT)
    a.vm = []

    def lane_nat(a):
        a("v_bfe_u32 v2, v0, 5, 1")
        a("v_lshlrev_b32 v2, 3, v2")

    def lane_pi(a):
        a("v_bfe_u32 v2, v0, 5, 1")
        a("v_lshlrev_b32 v2, 2, v2")

    def dec_wq(a):
        a("""
        s_sub_u32 s20, s2, %d
        s_and_b32 s21, s20, 7
        s_lshr_b32 s20, s20, 3
        s_lshl_b32 s20, s20, 2
        s_add_u32 s20, s20, s3
        s_lshl_b32 s30, s21, 16
        s_lshl_b32 s22, s20, 6
        s_add_u32 s30, s30, s22
        s_lshl_b32 s31, s20, 15
        s_lshl_b32 s22, s21, 12
        s_add_u32 s31, s31, s22
        s_add_u32 s31, s31, %d
        """ % (K1_WQ, WQF))
    shuffle_body(a, "L_k1_wq", A_WQ, 512 * 1024, 1024, lane_nat, lambda f, e: (16 * f + e) * 1024, WQF, 32, dec_wq, 64)

    def dec_w1(a):
        a("""
        s_sub_u32 s20, s2, %d
        s_and_b32 s21, s20, 7
        s_lshr_b32 s20, s20, 3
        s_lshl_b32 s20, s20, 2
        s_add_u32 s20, s20, s3
        s_cmp_ge_u32 s20, 43
        s_cbranch_scc1 L_k1_end
        s_mul_i32 s30, s21, %d
        s_lshl_b32 s22, s20, 6
        s_add_u32 s30, s30, s22
        s_lshl_b32 s31, s20, 15
        s_lshl_b32 s22, s21, 12
        s_add_u32 s31, s31, s22
        s_add_u32 s31, s31, %d
        """ % (K1_W1, 64 * 2752, W1F))
    shuffle_body(a, "L_k1_w1", A_W1, 512 * 2752, 2752, lane_nat, lambda f, e: (16 * f + e) * 2752, W1F, 32, dec_w1, 64)

    def dec_w2(a):
        a("""
        s_sub_u32 s20, s2, %d
        s_lshr_b32 s21, s20, 2
        s_and_b32 s20, s20, 3
        s_lshl_b32 s20, s20, 2
        s_add_u32 s20, s20, s3
        s_lshl_b32 s30, s21, 16
        s_lshl_b32 s22, s20, 6
        s_add_u32 s30, s30, s22
        s_mul_i32 s31, s20, %d
        s_lshl_b32 s22, s21, 12
        s_add_u32 s31, s31, s22
        s_add_u32 s31, s31, %d
        """ % (K1_W2, 86 * 1024, W2F))

    def w2_guard(a, f):
        if f == 2:
            a("s_cmp_eq_u32 s21, 21")
            a("s_cbranch_scc1 L_k1_end")
    shuffle_body(a, "L_k1_w2", A_W2, 1376 * 1024, 1024, lane_pi,
                 lambda f, e: (16 * f + (e & 3) + 8 * (e >> 2)) * 1024, W2F, 86, dec_w2, 64, dst_calc=w2_guard)

    def dec_wo(a):
        a("""
        s_sub_u32 s20, s2, %d
        s_and_b32 s21, s20, 7
        s_lshr_b32 s20, s20, 3
        s_lshl_b32 s20, s20, 2
        s_add_u32 s20, s20, s3
        s_lshl_b32 s30, s21, 16
        s_lshl_b32 s22, s20, 6
        s_add_u32 s30, s30, s22
        s_lshl_b32 s31, s21, 16
        s_lshl_b32 s22, s20, 12
        s_add_u32 s31, s31, s22
        s_add_u32 s31, s31, %d
        """ % (K1_WO, WOF))

    def lane_wo(a):
        a("v_bfe_u32 v2, v0, 5, 1")
        a("v_lshlrev_b32 v2, 4, v2")
        a("v_bfe_u32 v4, v0, 4, 1")
        a("v_lshl_add_u32 v2, v4, 2, v2")
    shuffle_body(a, "L_k1_wo", A_WO, 512 * 1024, 1024, lane_wo,
                 lambda f, e: (32 * (f & 1) + 8 * ((e >> 1) & 1) + 2 * (e >> 2) + (e & 1)) * 1024 + 32 * (f >> 1),
                 WOF, 0, dec_wo, 32, lanecol_mask=15)

    a.label("L_k1_wkv")
    a("s_load_dwordx4 s[16:19], s[0:1], %d" % A_WK)
    a("""
    s_sub_u32 s20, s2, %d
    s_cmp_ge_u32 s20, 2
    s_cbranch_scc1 L_k1_end
    s_lshl_b32 s20, s20, 2
    s_add_u32 s20, s20, s3
    s_lshl_b32 s30, s20, 11
    s_lshl_b32 s31, s20, 12
    s_add_u32 s31, s31, %d
    v_and_b32 v1, 15, v0
    v_lshlrev_b32 v1, 1, v1
    v_bfe_u32 v2, v0, 5, 1
    v_lshl_add_u32 v1, v2, 8, v1
    v_and_b32 v3, 63, v0
    v_lshlrev_b32 v3, 4, v3
    s_waitcnt lgkmcnt(0)
    """ % (K1_WKV, WKVF))
    a.srd(8, 16, 16384)
    a.srd(24, 18, 16384)
    a.srd(12, 6, WS_SIZE)
    for srd, mask in ((8, 0x0000ffff), (24, 0xffff0000)):
        a("s_mov_b32 exec_lo, 0x%x" % mask)
        a("s_mov_b32 exec_hi, 0x%x" % mask)
        for f in range(4):
            for e in range(8):
                a("buffer_load_ushort v%d, v1, s[%d:%d], s30 offen offset:%d" % (8 + 8 * f + e, srd, srd + 3, (16 * f + e) * 32))
        a("s_waitcnt vmcnt(0)")
    a("s_mov_b64 exec, -1")
    for f in range(4):
        for p in range(4):
            a("v_lshl_or_b32 v%d, v%d, 16, v%d" % (48 + 4 * f + p, 8 + 8 * f + 2 * p + 1, 8 + 8 * f + 2 * p))
    for f in range(4):
        a("buffer_store_dwordx4 %s, v3, s[12:15], s31 offen offset:%d" % (vr(48 + 4 * f, 4), 1024 * f))
    a("s_endpgm")
    return a.text(), 120


def gen_k2():
    a = Asm()
    W = 64
    XR = 8
    G, SA = 40, 48
    ACC = 192
    a("s_cmp_ge_u32 s2, 256")
    a("s_cbranch_scc1 L_k2_end")
    a("s_load_dwordx2 s[4:5], s[0:1], %d" % A_X)
    a("s_load_dwordx2 s[6:7], s[0:1], %d" % A_WS)
    wave_id(a, 3, 1)
    a("""
    s_and_b32 s20, s2, 7
    s_lshr_b32 s21, s2, 3
    s_lshr_b32 s22, s21, 2
    s_and_b32 s21, s21, 3
    s_lshl_b32 s20, s20, 3
    s_add_u32 s20, s20, s22
    s_lshl_b32 s22, s22, 2
    v_and_b32 v1, 63, v0
    v_lshlrev_b32 v2, 4, v1
    """)
    a("s_cmp_lt_u32 s3, 4")
    a("s_cbranch_scc1 L_k2_q")
    a("s_cmp_lg_u32 s21, 0")
    a("s_cbranch_scc1 L_k2_end")
    a("s_mov_b32 s23, %d" % WKVF)
    a("s_waitcnt lgkmcnt(0)")
    a.srd(12, 6, WS_SIZE)
    a("s_branch L_k2_loadw")
    a.label("L_k2_q")
    a("""
    s_lshl_b32 s24, s21, 2
    s_add_u32 s24, s24, s3
    s_lshl_b32 s23, s24, 15
    s_add_u32 s23, s23, %d
    s_lshl_b32 s25, s20, 5
    s_lshl_b32 s26, s3, 3
    s_add_u32 s25, s25, s26
    s_lshl_b32 s26, s25, 10
    s_add_u32 s27, s26, 4096
    s_lshl_b32 s28, s25, 3
    s_add_u32 s28, s28, %d
    v_lshlrev_b32 v3, 5, v1
    s_waitcnt lgkmcnt(0)
    s_load_dwordx16 s[32:47], s[6:7], s28
    """ % (WQF, STAT))
    a.srd(8, 4, 2048 * 1024)
    a.srd(12, 6, WS_SIZE)
    for r in range(8):
        a.vmem("buffer_load_dwordx4 %s, v2, s[8:11], s%d offen offset:%d" % (vr(XR + 4 * r, 4), 26 + (r >> 2), 1024 * (r & 3)), ("x", r))
        if r == 0:
            a.vmem("buffer_load_dwordx4 %s, v3, s[12:15], 0 offen offset:%d" % (vr(SA, 4), MOD), ("x", 0))
            a.vmem("buffer_load_dwordx4 %s, v3, s[12:15], 0 offen offset:%d" % (vr(SA + 4, 4), MOD + 16), ("x", 0))
            a.vmem("buffer_load_dwordx4 %s, v3, s[12:15], 0 offen offset:%d" % (vr(G, 4), MOD + 2048), ("x", 0))
            a.vmem("buffer_load_dwordx4 %s, v3, s[12:15], 0 offen offset:%d" % (vr(G + 4, 4), MOD + 2048 + 16), ("x", 0))
    a.label("L_k2_loadw")
    for c in range(8):
        a("s_add_u32 s29, s22, %d" % (4 * c))
        a("s_and_b32 s29, s29, 31")
        a("s_lshl_b32 s29, s29, 10")
        a("s_add_u32 s29, s29, s23")
        for q in range(4):
            a.vmem("buffer_load_dwordx4 %s, v2, s[12:15], s29 offen offset:%d" % (vr(W + 16 * c + 4 * q, 4), 1024 * q), ("w", 4 * c + q))
    a("v_and_b32 v56, 31, v0")
    a("v_bfe_u32 v57, v0, 5, 1")
    for q in range(4):
        a("v_add_u32 v58, %d, v57" % (2 * q))
        a("v_xor_b32 v58, v58, v56")
        a("v_lshlrev_b32 v58, 4, v58")
        a("v_lshl_add_u32 v%d, v57, 9, v58" % (4 + q))
    a("s_cmp_eq_u32 s3, 4")
    a("s_cbranch_scc1 L_k2_bar")
    a("""
    v_lshrrev_b32 v58, 1, v1
    v_subrev_u32 v58, s22, v58
    v_and_b32 v58, 31, v58
    v_lshlrev_b32 v58, 10, v58
    v_and_b32 v59, 1, v1
    v_lshl_add_u32 v58, v59, 9, v58
    s_lshl_b32 s29, s3, 7
    v_add_u32 v58, s29, v58
    v_and_b32 v59, 7, v1
    v_lshlrev_b32 v59, 4, v59
    s_waitcnt lgkmcnt(0)
    """)
    saved_vm = list(a.vm)
    for r in range(8):
        a.wait_vm(("x", r))
        sp = sr(32 + 2 * r, 2)
        for p in range(4):
            x = XR + 4 * r + p
            t = 60 + 2 * (p & 1)
            a("v_lshlrev_b32 v%d, 16, v%d" % (t, x))
            a("v_and_b32 v%d, 0xffff0000, v%d" % (t + 1, x))
            a("v_pk_fma_f32 %s, %s, %s, %s op_sel:[0,0,1] op_sel_hi:[1,0,1]" % (vr(t, 2), vr(t, 2), sp, sp))
            a("v_pk_fma_f32 %s, %s, %s, %s" % (vr(t, 2), vr(t, 2), vr(G + 2 * p, 2), vr(SA + 2 * p, 2)))
            a("v_cvt_pk_bf16_f32 v%d, v%d, v%d" % (x, t, t + 1))
        a("v_xor_b32 v56, %d, v59" % (16 * r))
        a("v_add_u32 v56, v56, v58")
        a("ds_write_b128 v56, %s" % vr(XR + 4 * r, 4))
    a("s_waitcnt lgkmcnt(0)")
    a.label("L_k2_bar")
    a("s_barrier")
    for i in range(8):
        a.ds("ds_read_b128 %s, v%d offset:%d" % (vr(XR + 4 * i, 4), 4 + (i & 3), 1024 * i), ("h", i))
    for i in range(32):
        a.wait_vm(("w", i))
        a.wait_lg(("h", i))
        a("v_mfma_f32_32x32x16_bf16 %s, %s, %s, %s" % (vr(ACC, 16), vr(W + 4 * i, 4), vr(XR + 4 * (i & 7), 4), "0" if i == 0 else vr(ACC, 16)))
        if i + 8 < 32 and i >= 1:
            k = i + 7
            a.ds("ds_read_b128 %s, v%d offset:%d" % (vr(XR + 4 * (k & 7), 4), 4 + (k & 3), 1024 * k), ("h", k))
        if i == 24:
            k = 31
            a.ds("ds_read_b128 %s, v%d offset:%d" % (vr(XR + 4 * (k & 7), 4), 4 + (k & 3), 1024 * k), ("h", k))
    a("s_cmp_eq_u32 s3, 4")
    a("s_cselect_b32 s30, 1.0, %s" % fhex(QSCALE))
    a("v_and_b32 v56, 31, v0")
    a("v_bfe_u32 v57, v0, 5, 1")
    a("s_nop 10")
    for r in range(16):
        a("v_mul_f32 v%d, s30, v%d" % (ACC + r, ACC + r))
    a("v_mul_f32 v60, v%d, v%d" % (ACC, ACC))
    a("v_mul_f32 v61, v%d, v%d" % (ACC + 8, ACC + 8))
    for r in range(1, 8):
        a("v_fmac_f32 v60, v%d, v%d" % (ACC + r, ACC + r))
        a("v_fmac_f32 v61, v%d, v%d" % (ACC + 8 + r, ACC + 8 + r))
    for p in range(8):
        a("v_cvt_pk_bf16_f32 v%d, v%d, v%d" % (XR + p, ACC + 2 * p, ACC + 2 * p + 1))
    a("v_permlane32_swap_b32 v60, v61")
    a("v_add_f32 v60, v60, v61")
    a("s_cmp_eq_u32 s3, 4")
    a("s_cbranch_scc1 L_k2_kv")
    a("""
    v_lshrrev_b32 v58, 3, v56
    v_lshlrev_b32 v58, 13, v58
    v_lshl_add_u32 v58, v57, 9, v58
    v_and_b32 v59, 7, v56
    v_lshl_add_u32 v58, v59, 4, v58
    s_lshl_b32 s29, s20, 15
    s_lshr_b32 s31, s24, 1
    s_lshl_b32 s31, s31, 10
    s_add_u32 s29, s29, s31
    s_and_b32 s31, s24, 1
    s_lshl_b32 s31, s31, 8
    s_add_u32 s29, s29, s31
    s_add_u32 s29, s29, %d
    buffer_store_dwordx4 %s, v58, s[12:15], s29 offen
    buffer_store_dwordx4 %s, v58, s[12:15], s29 offen offset:128
    """ % (QF, vr(XR, 4), vr(XR + 4, 4)))
    dpp_reduce63(a, [60], op="v_max_f32")
    a("""
    s_lshl_b32 s29, s20, 4
    s_add_u32 s29, s29, s24
    s_lshl_b32 s29, s29, 2
    s_add_u32 s29, s29, %d
    v_mov_b32 v58, 0
    s_mov_b32 exec_lo, 0
    s_mov_b32 exec_hi, 0x80000000
    buffer_store_dword v60, v58, s[12:15], s29 offen
    s_endpgm
    """ % NQ)
    a.label("L_k2_kv")
    a("""
    s_lshl_b32 s29, s20, 10
    s_add_u32 s31, s29, %d
    s_add_u32 s29, s29, %d
    buffer_store_dwordx4 %s, v2, s[12:15], s29 offen
    v_lshrrev_b32 v58, 3, v56
    v_lshlrev_b32 v58, 8, v58
    v_lshl_add_u32 v58, v57, 6, v58
    v_and_b32 v59, 7, v56
    v_lshl_add_u32 v58, v59, 1, v58
    """ % (VF, KF, vr(XR, 4)))
    for r in range(8):
        off = ((r & 3) + 8 * (r >> 2)) * 16
        op = "buffer_store_short" if r % 2 == 0 else "buffer_store_short_d16_hi"
        a("%s v%d, v58, s[12:15], s31 offen offset:%d" % (op, XR + 4 + (r >> 1), off))
    dpp_reduce63(a, [60], op="v_max_f32", upto32=True)
    a("""
    s_lshl_b32 s29, s20, 3
    s_add_u32 s29, s29, %d
    v_lshlrev_b32 v58, 2, v57
    s_mov_b32 exec_lo, 0x80000000
    s_mov_b32 exec_hi, 0x80000000
    buffer_store_dword v60, v58, s[12:15], s29 offen
    """ % NKV)
    a.label("L_k2_end")
    a("s_endpgm")
    return a.text(), 208


L_ACC = 0
L_AF = 18432
L_XB = L_AF + 8192
L_MX = L_XB + 8 * 2064
K3_LDS = L_MX + 1024


def gen_k3():
    a = Asm()
    KR, VR_, QR, S0, O0, WO, XA, AF, ZR, CR = 16, 48, 112, 120, 152, 184, 216, 232, 236, 240
    IDXP, IDXO = 14, 15
    V_LANE16, V_VOFF, V_ACCA, V_AFW, V_XROW = 2, 3, 4, 5, 8
    V_FL = 7
    S = lambda t: S0 + 16 * (t & 1)
    O = lambda j: O0 + 16 * (j & 1)
    Q = lambda j: QR + 4 * (j & 1)

    a("s_cmp_ge_u32 s2, 256")
    a("s_cbranch_scc1 L_k3_end")
    a("s_load_dwordx2 s[4:5], s[0:1], %d" % A_X)
    a("s_load_dwordx2 s[6:7], s[0:1], %d" % A_WS)
    wave_id(a, 3, 1)
    a("""
    s_and_b32 s20, s2, 7
    s_lshr_b32 s21, s2, 3
    s_lshl_b32 s20, s20, 5
    s_add_u32 s20, s20, s21
    v_and_b32 v1, 63, v0
    v_lshlrev_b32 v2, 4, v1
    v_and_b32 v6, 15, v0
    v_bfe_u32 v7, v0, 5, 1
    v_lshlrev_b32 v3, 4, v6
    v_lshl_add_u32 v3, v7, 8, v3
    v_lshlrev_b32 v4, 2, v1
    """)
    for r in range(4):
        a("v_mov_b32 v%d, 0" % (ZR + r))
    a("v_lshlrev_b32 v13, 2, v0")
    a("v_mov_b32 v12, 0xff800000")
    a("v_and_b32 v13, 0x3fc, v13")
    a("ds_write_b32 v13, v12 offset:%d" % L_MX)
    for r in range(64):
        a("v_mov_b32 v%d, 0x3f803f80" % (VR_ + r))
    for r in range(16):
        a("v_mov_b32 v%d, 0" % (XA + r))
    a("v_mov_b32 v%d, 0xdddd" % IDXP)
    a("v_bfe_u32 v12, v0, 3, 1")
    a("v_mul_u32_u24 v12, 0xaaaa, v12")
    a("v_add_u32 v%d, 0x4444, v12" % IDXO)
    a("""
    v_and_b32 v12, 7, v0
    v_bfe_u32 v13, v0, 3, 2
    v_lshl_add_u32 v12, v13, 4, v12
    v_lshlrev_b32 v12, 4, v12
    v_lshl_add_u32 v12, v7, 3, v12
    s_lshr_b32 s21, s3, 2
    s_lshl_b32 s21, s21, 7
    s_and_b32 s22, s3, 3
    s_lshl_b32 s22, s22, 1
    s_add_u32 s21, s21, s22
    v_add_u32 v5, s21, v12
    s_lshl_b32 s21, s20, 13
    s_add_u32 s21, s21, %d
    s_lshl_b32 s22, s3, 13
    s_add_u32 s23, s22, %d
    s_add_u32 s24, s23, 4096
    s_add_u32 s25, s22, %d
    s_add_u32 s26, s25, 4096
    s_add_u32 s27, s22, %d
    s_lshr_b32 s28, s20, 2
    s_lshl_b32 s28, s28, 6
    s_add_u32 s28, s28, %d
    s_lshl_b32 s29, s20, 3
    s_add_u32 s29, s29, s3
    s_lshl_b32 s30, s29, 10
    v_lshlrev_b32 v12, 3, v1
    s_waitcnt lgkmcnt(0)
    s_load_dwordx16 s[32:47], s[6:7], s28
    """ % (QF, KF, VF, WOF, NQ))
    a.srd(8, 4, 2048 * 1024)
    a.srd(12, 6, WS_SIZE)
    a("s_mov_b32 s31, %d" % NKV)
    a.vmem("buffer_load_dwordx2 v[6:7], v12, s[12:15], s31 offen", "nkv")
    a.vmem("buffer_load_dwordx4 %s, v2, s[12:15], s21 offen" % vr(Q(0), 4), ("q", 0))
    for t in range(8):
        a.vmem("buffer_load_dwordx4 %s, v2, s[12:15], s%d offen offset:%d" % (vr(KR + 4 * t, 4), 23 + (t >> 2), 1024 * (t & 3)), ("k", t))
        a("s_mov_b32 exec_lo, 0xffff")
        a("s_mov_b32 exec_hi, 0xffff")
        for u in range(2):
            a.vmem("buffer_load_dwordx4 %s, v3, s[12:15], s%d offen offset:%d" % (vr(VR_ + 8 * t + 4 * u, 4), 25 + (t >> 2), 1024 * (t & 3) + 512 * u), ("v", t))
        a("s_mov_b64 exec, -1")
    a.vmem("buffer_load_dwordx4 %s, v2, s[12:15], s21 offen offset:1024" % vr(Q(1), 4), ("q", 1))

    def load_wo(j):
        a("s_add_u32 s48, s27, %d" % (65536 * j))
        a("s_add_u32 s49, s48, 4096")
        for f in range(8):
            a.vmem("buffer_load_dwordx4 %s, v2, s[12:15], s%d offen offset:%d" % (vr(WO + 4 * f, 4), 48 + (f >> 2), 1024 * (f & 3)), ("wo", j))
    load_wo(0)
    a.vmem("buffer_load_dwordx4 %s, v2, s[8:11], s30 offen" % vr(V_XROW, 4), "xrow")
    a("s_waitcnt lgkmcnt(0)")
    a("s_barrier")
    for i in range(1, 16):
        a("s_max_u32 s32, s32, s%d" % (32 + i))
    a.wait_vm("nkv")
    a("v_mul_f32 v6, s32, v6")
    a("v_cmp_ge_f32 vcc, %s, v6" % fhex((TBOUND / 1.02) ** 2))
    a("s_mov_b64 s[34:35], vcc")
    a("v_cmp_ge_f32 vcc, %s, v7" % fhex(2.0 ** 80))
    a("s_and_b64 s[34:35], s[34:35], vcc")
    a("v_cmp_le_f32 vcc, %s, v7" % fhex(2.0 ** -80))
    a("s_cmp_eq_u64 vcc, 0")
    a("s_cbranch_scc1 L_k3_slow")
    a("s_cmp_eq_u64 s[34:35], -1")
    if FORCE_SLOW:
        a("s_branch L_k3_slow")
    a("s_cbranch_scc0 L_k3_slow")
    vm_entry = list(a.vm)

    def qk(t, slow):
        j, tt = t >> 3, t & 7
        a.wait_vm(("q", j))
        a.wait_vm(("k", tt))
        a("v_mfma_f32_32x32x16_bf16 %s, %s, %s, %s" % (vr(S(t), 16), vr(KR + 4 * tt, 4), vr(Q(j), 4), vr(CR, 16) if slow else "0"))

    def pv(t, u):
        j, tt = t >> 3, t & 7
        a.wait_vm(("v", tt))
        a("v_smfmac_f32_32x32x32_bf16 %s, %s, %s, v%d" % (vr(O(j), 16), vr(VR_ + 8 * tt + 4 * u, 4), vr(S(t) + 8 * u, 8), IDXP))

    def zero_o(j):
        a("v_mfma_f32_32x32x16_bf16 %s, %s, %s, 0" % (vr(O(j), 16), vr(ZR, 4), vr(ZR, 4)))

    def flush(j):
        for r in range(0, 8, 2):
            a.ds("ds_write2st64_b32 v%d, v%d, v%d offset0:%d offset1:%d" % (V_FL, O(j) + r, O(j) + r + 1, r, r + 1), "add")
        a.ds("ds_write_b32 v%d, v%d offset:2048" % (V_FL, O(j) + 8), "add")

    def norm_read(j):
        a.wait_lg_all()
        a("s_barrier")
        for i in range(4):
            a.ds("ds_read2st64_b32 %s, v%d offset0:%d offset1:%d" % (vr(O(j) + 8 + 2 * i, 2), V_ACCA, 18 * i + 8, 18 * i + 17), "nr")
        for i in range(4):
            a.ds("ds_read2st64_b32 %s, v13 offset0:%d offset1:%d" % (vr(O(j) + 2 * i, 2), 18 * i, 18 * i + 9), "nr")

    def norm_a(j):
        a.wait_lg_all()
        o = O(j)
        for b in (o + 8, o):
            a("v_pk_add_f32 %s, %s, %s" % (vr(b, 2), vr(b, 2), vr(b + 2, 2)))
            a("v_pk_add_f32 %s, %s, %s" % (vr(b + 4, 2), vr(b + 4, 2), vr(b + 6, 2)))
        a("v_pk_add_f32 %s, %s, %s" % (vr(o + 8, 2), vr(o + 8, 2), vr(o + 12, 2)))
        a("v_pk_add_f32 %s, %s, %s" % (vr(o, 2), vr(o, 2), vr(o + 4, 2)))
        a("v_add_f32 v%d, v%d, v%d" % (o + 8, o + 8, o + 9))
        a("v_rcp_f32 v%d, v%d" % (o + 8, o + 8))
        a("v_add_f32 v%d, v%d, v%d" % (o, o, o + 1))

    def norm_b(j):
        o = O(j)
        a("v_mul_f32 v%d, v%d, v%d" % (o, o, o + 8))
        a("v_cvt_pk_bf16_f32 v%d, v%d, v%d" % (o, o, o))
        a.ds("ds_write_b16 v%d, v%d offset:%d" % (V_AFW, o, L_AF + 1024 * j), "afw")

    def af_read(j):
        a.wait_lg_all()
        a("s_barrier")
        a.ds("ds_read_b128 %s, v2 offset:%d" % (vr(AF, 4), L_AF + 1024 * j), "af")

    def wo_mm(j, t4):
        if t4 == 0:
            a.wait_lg_all()
            a.wait_vm(("wo", j))
        a("v_smfmac_f32_16x16x64_bf16 %s, %s, %s, v%d" % (vr(XA + 4 * t4, 4), vr(AF, 4), vr(WO + 8 * t4, 8), IDXO))

    def load_c(j):
        a.ds("ds_read_b32 v%d, v12 offset:%d" % (CR, L_MX + 128 * j), "mx")
        a.wait_lg_all()
        a("v_sub_f32 v%d, 0, v%d" % (CR, CR))
        for r in range(1, 16):
            a("v_mov_b32 v%d, v%d" % (CR + r, CR))
        a("s_nop 1")

    def main(slow):
        a("s_lshl_b32 s50, s3, 8")
        a("v_add_u32 v13, s50, v4")
        a("s_mul_i32 s51, s3, 2304")
        a("v_add_u32 v%d, s51, v4" % V_FL)
        if slow:
            load_c(0)
        zero_o(0)
        qk(0, slow)
        a("s_nop 11")
        for t in range(64):
            j, tt = t >> 3, t & 7
            ev = {}

            def at(p, f):
                ev.setdefault(p, []).append(f)
            if t > 0:
                at(2, lambda: pv(t - 1, 1))
            if t + 1 < 64:
                if slow and tt == 7:
                    at(5, lambda: load_c(j + 1))
                at(5, lambda: qk(t + 1, slow))
            at(11, lambda: pv(t, 0))
            if tt == 7 and j < 7:
                at(14, lambda: zero_o(j + 1))
            if tt == 0 and j + 1 < 8 and j >= 1:
                at(8, lambda: a.vmem("buffer_load_dwordx4 %s, v2, s[12:15], s%d offen offset:%d" % (
                    vr(Q(j + 1), 4), 21 if j + 1 < 4 else 22, 1024 * ((j + 1) & 3)), ("q", j + 1)))
            if j >= 1:
                g = j - 1
                if tt == 1:
                    at(0, lambda: flush(g))
                if tt == 2:
                    at(8, lambda: norm_read(g))
                if tt == 3:
                    at(0, lambda: norm_a(g))
                    at(1, lambda: norm_b(g))
                if tt == 4:
                    at(8, lambda: af_read(g))
                if tt == 5:
                    at(0, lambda: wo_mm(g, 0))
                    at(8, lambda: wo_mm(g, 1))
                    at(14, lambda: wo_mm(g, 2))
                if tt == 6:
                    at(0, lambda: wo_mm(g, 3))
                    at(8, lambda: load_wo(g + 1))
            for p in range(16):
                for f in ev.get(p, []):
                    f()
                a("v_exp_f32 v%d, v%d" % (S(t) + p, S(t) + p))
        a("s_nop 1")
        pv(63, 1)

    a("s_add_u32 s22, s21, 4096")
    main(False)
    vm_exit = list(a.vm)
    a.label("L_k3_tail")
    a("v_lshlrev_b32 v12, 5, v1")
    a("s_mov_b32 s31, %d" % (MOD + 4096))
    for i, off in enumerate((0, 2048, 4096)):
        if off == 4096:
            a("s_mov_b32 s31, %d" % (MOD + 8192))
            off = 0
        a.vmem("buffer_load_dwordx4 %s, v12, s[12:15], s31 offen offset:%d" % (vr(KR + 8 * i, 4), off), "mod")
        a.vmem("buffer_load_dwordx4 %s, v12, s[12:15], s31 offen offset:%d" % (vr(KR + 8 * i + 4, 4), off + 16), "mod")
    a("s_nop 3")
    flush(7)
    norm_read(7)
    norm_a(7)
    a("s_nop 0")
    norm_b(7)
    af_read(7)
    for t4 in range(4):
        wo_mm(7, t4)
    a("""
    v_and_b32 v6, 15, v0
    v_bfe_u32 v7, v0, 5, 1
    v_lshl_add_u32 v6, v7, 4, v6
    v_lshlrev_b32 v6, 2, v6
    v_bfe_u32 v7, v0, 4, 1
    v_mul_u32_u24 v7, %d, v7
    v_add_u32 v6, v6, v7
    v_add_u32 v6, s50, v6
    s_nop 2
    """ % (4 * 2064))
    for p in range(2):
        for r in range(4):
            a("v_permlane32_swap_b32 v%d, v%d" % (XA + 8 * p + r, XA + 8 * p + 4 + r))
    for p in range(2):
        for r in range(4):
            a("v_add_f32 v%d, v%d, v%d" % (XA + 8 * p + r, XA + 8 * p + r, XA + 8 * p + 4 + r))
    for p in range(2):
        for r in range(4):
            a.ds("ds_write_b32 v6, v%d offset:%d" % (XA + 8 * p + r, L_XB + 2064 * r + 128 * p))
    a("s_mul_i32 s50, s3, 2064")
    a("v_add_u32 v6, s50, v12")
    a.wait_lg_all()
    a("s_barrier")
    A_ = S0
    X_ = S0 + 8
    a("ds_read_b128 %s, v6 offset:%d" % (vr(A_, 4), L_XB))
    a("ds_read_b128 %s, v6 offset:%d" % (vr(A_ + 4, 4), L_XB + 16))
    a.wait_vm_all()
    for p in range(4):
        a("v_lshlrev_b32 v%d, 16, v%d" % (X_ + 2 * p, V_XROW + p))
        a("v_and_b32 v%d, 0xffff0000, v%d" % (X_ + 2 * p + 1, V_XROW + p))
    a("s_waitcnt lgkmcnt(0)")
    GA, SB, G2 = KR, KR + 8, KR + 16
    for e in range(8):
        a("v_fma_f32 v%d, v%d, v%d, v%d" % (A_ + e, A_ + e, GA + e, X_ + e))
    for p in range(4):
        a("v_cvt_pk_bf16_f32 v%d, v%d, v%d" % (V_XROW + p, A_ + 2 * p, A_ + 2 * p + 1))
    a("s_add_u32 s31, s30, %d" % X1)
    a("buffer_store_dwordx4 %s, v2, s[12:15], s31 offen" % vr(V_XROW, 4))
    for p in range(4):
        a("v_lshlrev_b32 v%d, 16, v%d" % (A_ + 2 * p, V_XROW + p))
        a("v_and_b32 v%d, 0xffff0000, v%d" % (A_ + 2 * p + 1, V_XROW + p))
    a("v_add_f32 v6, v%d, v%d" % (A_, A_ + 1))
    a("v_add_f32 v7, v%d, v%d" % (A_ + 2, A_ + 3))
    a("v_add_f32 v12, v%d, v%d" % (A_ + 4, A_ + 5))
    a("v_add_f32 v13, v%d, v%d" % (A_ + 6, A_ + 7))
    a("v_add_f32 v6, v6, v7")
    a("v_add_f32 v12, v12, v13")
    a("v_add_f32 v6, v6, v12")
    dpp_reduce63(a, [6])
    a("v_mul_f32 v6, %s, v6" % fhex(1.0 / 512))
    a("s_nop 0")
    a("v_readlane_b32 s32, v6, 63")
    a("s_nop 1")
    for e in range(8):
        a("v_subrev_f32 v%d, s32, v%d" % (X_ + e, A_ + e))
    a("v_mul_f32 v7, v%d, v%d" % (X_, X_))
    a("v_mul_f32 v12, v%d, v%d" % (X_ + 1, X_ + 1))
    for e in range(2, 8, 2):
        a("v_fmac_f32 v7, v%d, v%d" % (X_ + e, X_ + e))
        a("v_fmac_f32 v12, v%d, v%d" % (X_ + e + 1, X_ + e + 1))
    a("v_add_f32 v7, v7, v12")
    dpp_reduce63(a, [7])
    a("v_mul_f32 v7, %s, v7" % fhex(1.0 / 512))
    bf16_round(a, 6, 6)
    bf16_round(a, 7, 7)
    a("v_add_f32 v7, %s, v7" % fhex(1e-5))
    bf16_round(a, 7, 7)
    a("v_sqrt_f32 v7, v7")
    a("s_nop 0")
    bf16_round(a, 7, 7)
    a("v_rcp_f32 v7, v7")
    a("s_nop 0")
    a("v_mul_f32 v6, v6, v7")
    a("v_sub_f32 v6, 0, v6")
    a("v_readlane_b32 s32, v7, 63")
    a("v_readlane_b32 s33, v6, 63")
    a("""
    v_lshrrev_b32 v6, 1, v1
    v_lshlrev_b32 v6, 10, v6
    v_and_b32 v7, 1, v1
    v_lshl_add_u32 v6, v7, 9, v6
    s_lshr_b32 s31, s29, 5
    s_lshl_b32 s31, s31, 15
    s_and_b32 s34, s29, 31
    s_lshl_b32 s34, s34, 4
    s_add_u32 s31, s31, s34
    s_add_u32 s31, s31, %d
    """ % H2F)
    for p in range(4):
        t = A_ + 2 * p
        a("v_pk_fma_f32 %s, %s, s[32:33], s[32:33] op_sel:[0,0,1] op_sel_hi:[1,0,1]" % (vr(t, 2), vr(t, 2)))
        a("v_pk_fma_f32 %s, %s, %s, %s" % (vr(t, 2), vr(t, 2), vr(G2 + 2 * p, 2), vr(SB + 2 * p, 2)))
        a("v_cvt_pk_bf16_f32 v%d, v%d, v%d" % (X_ + p, t, t + 1))
    a("buffer_store_dwordx4 %s, v6, s[12:15], s31 offen" % vr(X_, 4))
    a.label("L_k3_end")
    a("s_endpgm")

    a.label("L_k3_slow")
    a.vm = list(vm_entry)
    a.lg = []
    a.wait_vm_all()
    a("s_add_u32 s22, s21, 4096")
    a("v_and_b32 v12, 31, v0")
    a("v_lshlrev_b32 v12, 2, v12")
    for j in range(8):
        a("buffer_load_dwordx4 %s, v2, s[12:15], s%d offen offset:%d" % (vr(AF, 4), 21 if j < 4 else 22, 1024 * (j & 3)))
        a("v_mov_b32 v6, 0xff800000")
        a("s_waitcnt vmcnt(0)")
        for tt in range(8):
            a("v_mfma_f32_32x32x16_bf16 %s, %s, %s, 0" % (vr(S0, 16), vr(KR + 4 * tt, 4), vr(AF, 4)))
            a("s_nop 11")
            for r in range(0, 16, 2):
                a("v_max3_f32 v6, v6, v%d, v%d" % (S0 + r, S0 + r + 1))
        a("ds_max_f32 v12, v6 offset:%d" % (L_MX + 128 * j))
    a("s_waitcnt lgkmcnt(0)")
    a("s_barrier")
    main(True)
    assert a.vm == vm_exit, (a.vm, vm_exit)
    a("s_branch L_k3_tail")
    return a.text(), 256


def gen_k4():
    a = Asm()
    H, ACC, R = 8, 136, 184
    a("s_cmp_ge_u32 s2, 240")
    a("s_cbranch_scc1 L_k4_end")
    a("s_load_dwordx2 s[6:7], s[0:1], %d" % A_WS)
    wave_id(a, 3, 1)
    a("""
    s_and_b32 s20, s2, 7
    s_lshr_b32 s21, s2, 3
    s_cmp_ge_u32 s21, 15
    s_cselect_b32 s22, 4, 0
    s_cselect_b32 s23, 15, 0
    s_sub_u32 s21, s21, s23
    s_lshl_b32 s20, s20, 3
    s_add_u32 s20, s20, s22
    s_add_u32 s20, s20, s3
    s_mul_i32 s21, s21, 3
    v_and_b32 v1, 63, v0
    v_lshlrev_b32 v2, 4, v1
    s_lshl_b32 s24, s20, 15
    s_add_u32 s24, s24, %d
    s_lshl_b32 s25, s21, 15
    s_lshl_b32 s26, s3, 11
    s_add_u32 s25, s25, s26
    s_waitcnt lgkmcnt(0)
    """ % H2F)
    a.srd(12, 6, WS_SIZE)
    a.srd_off(8, 6, W1F, 43 * 32768)
    for s in range(4):
        for c in range(3):
            a("s_add_u32 m0, s26, %d" % (c * 32768 + s * 8192))
            a("s_add_u32 s27, s25, %d" % (c * 32768 + s * 8192))
            a.vmem("buffer_load_dwordx4 v2, s[8:11], s27 offen lds", ("st", s))
            a.vmem("buffer_load_dwordx4 v2, s[8:11], s27 offen offset:1024 lds", ("st", s))
        for hh in range(2):
            a("s_add_u32 s27, s24, %d" % (s * 8192 + hh * 4096))
            for q in range(4):
                a.vmem("buffer_load_dwordx4 %s, v2, s[12:15], s27 offen offset:%d" % (vr(H + 32 * s + 16 * hh + 4 * q, 4), 1024 * q), ("st", s))
    a("v_add_u32 v3, 0x10000, v2")
    seq = [(s, k, c) for s in range(4) for k in range(8) for c in range(3)]

    def rd(n):
        s, k, c = seq[n]
        off = c * 32768 + (8 * s + k) * 1024
        base = 2 if off < 65536 else 3
        a.ds("ds_read_b128 %s, v%d offset:%d" % (vr(R + 4 * (n & 7), 4), base, off & 0xffff), ("r", n))
    nread = 0
    for n, (s, k, c) in enumerate(seq):
        if k == 0 and c == 0:
            a.wait_vm(("st", s))
            a("s_barrier")
        while nread < len(seq) and nread < n + 7 and seq[nread][0] == s:
            rd(nread)
            nread += 1
        a.wait_lg(("r", n))
        a("v_mfma_f32_32x32x16_bf16 %s, %s, %s, %s" % (vr(ACC + 16 * c, 16), vr(R + 4 * (n & 7), 4), vr(H + 4 * (8 * s + k), 4),
                                                       "0" if (s == 0 and k == 0) else vr(ACC + 16 * c, 16)))
    a("s_mul_i32 s27, s20, %d" % (86 * 1024))
    a("s_lshl_b32 s28, s21, 11")
    a("s_add_u32 s27, s27, s28")
    a("s_add_u32 s27, s27, %d" % GF)
    a("s_mov_b32 s30, %s" % fhex(-LOG2E))
    a("s_mov_b32 s31, s30")
    a("s_nop 6")
    for c in range(3):
        if c == 1:
            a("s_cmp_eq_u32 s21, 42")
            a("s_cbranch_scc1 L_k4_end")
        y = ACC + 16 * c
        T = H
        for r in range(0, 16, 2):
            a("v_pk_mul_f32 %s, %s, s[30:31]" % (vr(T + r, 2), vr(y + r, 2)))
        for r in range(16):
            a("v_exp_f32 v%d, v%d" % (T + r, T + r))
        for r in range(0, 16, 2):
            a("v_pk_add_f32 %s, %s, 1.0 op_sel_hi:[1,0]" % (vr(T + r, 2), vr(T + r, 2)))
        for r in range(16):
            a("v_rcp_f32 v%d, v%d" % (T + r, T + r))
        for r in range(0, 16, 2):
            a("v_pk_mul_f32 %s, %s, %s" % (vr(T + r, 2), vr(T + r, 2), vr(y + r, 2)))
        P = H + 16 + 8 * c
        for r in range(0, 16, 2):
            a("v_cvt_pk_bf16_f32 v%d, v%d, v%d" % (P + r // 2, T + r, T + r + 1))
        if c == 2:
            a("s_add_u32 s27, s27, 4096")
        off = 2048 * (c & 1)
        a("buffer_store_dwordx4 %s, v2, s[12:15], s27 offen offset:%d" % (vr(P, 4), off))
        a("buffer_store_dwordx4 %s, v2, s[12:15], s27 offen offset:%d" % (vr(P + 4, 4), off + 1024))
    a.label("L_k4_end")
    a("s_endpgm")
    return a.text(), 216


def gen_k5():
    a = Asm()
    ACC, R, DEPTH = 16, 80, 10
    NS = 22
    a("s_cmp_ge_u32 s2, 256")
    a("s_cbranch_scc1 L_k5_end")
    a("s_load_dwordx2 s[4:5], s[0:1], %d" % A_OUT)
    a("s_load_dwordx2 s[6:7], s[0:1], %d" % A_WS)
    wave_id(a, 3, 1)
    a("""
    s_and_b32 s20, s2, 7
    s_lshr_b32 s21, s2, 3
    s_lshr_b32 s22, s21, 3
    s_and_b32 s21, s21, 7
    s_lshl_b32 s20, s20, 3
    s_lshl_b32 s22, s22, 1
    s_add_u32 s20, s20, s22
    s_lshl_b32 s21, s21, 1
    s_mul_i32 s22, s3, 22
    s_cmp_eq_u32 s3, 3
    s_cselect_b32 s23, 1, 0
    s_sub_u32 s22, s22, s23
    s_lshl_b32 s22, s22, 10
    s_mul_i32 s24, s20, %d
    s_add_u32 s24, s24, s22
    s_add_u32 s24, s24, %d
    s_add_u32 s25, s24, %d
    s_mul_i32 s26, s21, %d
    s_add_u32 s26, s26, s22
    s_add_u32 s26, s26, %d
    s_add_u32 s27, s26, %d
    v_and_b32 v1, 63, v0
    v_lshlrev_b32 v2, 4, v1
    s_waitcnt lgkmcnt(0)
    """ % (86 * 1024, GF, 86 * 1024, 86 * 1024, W2F, 86 * 1024))
    a.srd(12, 6, WS_SIZE)
    a.srd(8, 4, 2048 * 1024)

    def ld(k):
        b = R + 16 * (k % DEPTH)
        if k > 0 and k % 4 == 0:
            for s in range(24, 28):
                a("s_add_u32 s%d, s%d, 4096" % (s, s))
        if k == NS - 1:
            a("s_cmp_ge_u32 s3, 2")
            for s in range(24, 28):
                a("s_cselect_b32 s%d, 0x%x, s%d" % (s, WS_SIZE, s))
        for i in range(4):
            a.vmem("buffer_load_dwordx4 %s, v2, s[12:15], s%d offen offset:%d" % (vr(b + 4 * i, 4), 24 + i, 1024 * (k & 3)), ("k", k))
    for k in range(DEPTH):
        ld(k)
    a("""
    s_lshr_b32 s28, s3, 1
    s_add_u32 s28, s28, s20
    s_and_b32 s29, s3, 1
    s_add_u32 s29, s29, s21
    s_lshl_b32 s30, s28, 15
    s_lshl_b32 s31, s29, 6
    s_add_u32 s30, s30, s31
    s_add_u32 s31, s30, %d
    s_lshl_b32 s32, s29, 7
    s_add_u32 s32, s32, %d
    v_and_b32 v3, 31, v0
    v_lshlrev_b32 v3, 10, v3
    v_bfe_u32 v4, v0, 5, 1
    v_lshl_add_u32 v3, v4, 3, v3
    v_lshlrev_b32 v4, 4, v4
    """ % (X1, MOD + 5 * 2048))
    for k in range(NS):
        a.wait_vm(("k", k))
        b = R + 16 * (k % DEPTH)
        for rt in range(2):
            for ct in range(2):
                acc = ACC + 16 * (2 * rt + ct)
                a("v_mfma_f32_32x32x16_bf16 %s, %s, %s, %s" % (vr(acc, 16), vr(b + 8 + 4 * ct, 4), vr(b + 4 * rt, 4), "0" if k == 0 else vr(acc, 16)))
        if k + DEPTH < NS:
            ld(k + DEPTH)
        if k == NS - DEPTH:
            for q in range(4):
                a.vmem("buffer_load_dwordx2 %s, v3, s[12:15], s31 offen offset:%d" % (vr(8 + 2 * q, 2), 16 * q), "ep")
            for q in range(4):
                a.vmem("buffer_load_dwordx4 %s, v4, s[12:15], s32 offen offset:%d" % (vr(240 + 4 * q, 4), 32 * q), "ep")
    a("s_lshl_b32 s33, s3, 12")
    a("v_add_u32 v5, s33, v2")
    a("s_lshl_b32 s33, s3, 14")
    a("v_add_u32 v6, s33, v2")
    a("s_nop 8")
    for t in range(4):
        for q in range(4):
            a("ds_write_b128 v5, %s offset:%d" % (vr(ACC + 16 * t + 4 * q, 4), 16384 * t + 1024 * q))
    a("s_waitcnt lgkmcnt(0)")
    a("s_barrier")
    for w in range(4):
        for q in range(4):
            a("ds_read_b128 %s, v6 offset:%d" % (vr(ACC + 16 * w + 4 * q, 4), 4096 * w + 1024 * q))
    a("s_waitcnt lgkmcnt(0)")
    for r in range(0, 16, 2):
        a("v_pk_add_f32 %s, %s, %s" % (vr(ACC + r, 2), vr(ACC + r, 2), vr(ACC + 16 + r, 2)))
        a("v_pk_add_f32 %s, %s, %s" % (vr(ACC + 32 + r, 2), vr(ACC + 32 + r, 2), vr(ACC + 48 + r, 2)))
    for r in range(0, 16, 2):
        a("v_pk_add_f32 %s, %s, %s" % (vr(ACC + r, 2), vr(ACC + r, 2), vr(ACC + 32 + r, 2)))
    a.wait_vm_all()
    for p in range(8):
        a("v_lshlrev_b32 v%d, 16, v%d" % (ACC + 16 + 2 * p, 8 + p))
        a("v_and_b32 v%d, 0xffff0000, v%d" % (ACC + 17 + 2 * p, 8 + p))
    for r in range(0, 16, 2):
        a("v_pk_fma_f32 %s, %s, %s, %s" % (vr(ACC + r, 2), vr(ACC + r, 2), vr(240 + r, 2), vr(ACC + 16 + r, 2)))
    for p in range(8):
        a("v_cvt_pk_bf16_f32 v%d, v%d, v%d" % (8 + p, ACC + 2 * p, ACC + 2 * p + 1))
    for q in range(4):
        a("buffer_store_dwordx2 %s, v3, s[8:11], s30 offen offset:%d" % (vr(8 + 2 * q, 2), 16 * q))
    a.label("L_k5_end")
    a("s_endpgm")
    return a.text(), 256


def main():
    ks = [("k1_kernel", gen_k1, (504, 256, 1024)),
          ("k2_kernel", gen_k2, (256, 320, 32768)),
          ("k3_kernel", gen_k3, (256, 512, K3_LDS)),
          ("k4_kernel", gen_k4, (240, 256, 98304)),
          ("k5_kernel", gen_k5, (256, 256, 65536))]
    out = "; adaLN + MQA attention + SiLU MLP block, gfx950 (generated by gen/gen.py)\n"
    for n, g, (gx, bx, lds) in ks:
        out += "; @launch kernel=%s grid=(%d,1,1) block=(%d,1,1) lds=%d\n" % (n, gx, bx, lds)
    out += '.amdgcn_target "amdgcn-amd-amdhsa--gfx950"\n.text\n'
    descs = ""
    for n, g, _ in ks:
        body, vg = g()
        out += kernel_header(n) + body
        descs += kernel_desc(n, vg)
    out += '.section .rodata,"a"\n' + descs
    path = sys.argv[1] if len(sys.argv) > 1 else "cdna_kernels/%s.s" % NAME
    open(path, "w").write(out)
    print("wrote", path, len(out), "bytes")


if __name__ == "__main__":
    main()
```

```python
import sys, os, math
sys.path.insert(0, os.path.dirname(os.path.abspath(__file__)))
from asmlib import *

NAME = "adaLN_cond__grouped_kv_mqa__dense_activation_silu__prompt"
A_X, A_WQ, A_WK, A_WV, A_WO, A_BX, A_W1, A_W2, A_C, A_WMOD, A_OUT, A_DBG, A_WS = [8 * i for i in range(13)]
MOD = 0x000000
STAT = 0x004000
NQ = 0x008000
NKV = 0x009000
WQF = 0x010000
WKVF = 0x090000
WOF = 0x0A0000
W1F = 0x120000
W2F = 0x280000
QF = 0x400000
KF = 0x600000
VF = 0x610000
X1 = 0x700000
H2F = 0x900000
GF = 0xB00000
WS_SIZE = 0x1100000
LOG2E = 1.4426950408889634
QSCALE = 0.25 * LOG2E
TBOUND = 60.0

FORCE_SLOW = os.environ.get("FORCE_SLOW", "0") == "1"
STAMPS = os.environ.get("STAMPS", "0") == "1"
STAMP_BASE = 0x1080000


class Stamper:
    def __init__(self, a, kidx):
        self.a, self.k, self.n = a, kidx, 0

    def start(self):
        if STAMPS:
            self.a("s_memrealtime s[56:57]")
            self.stamp()

    def stamp(self):
        if STAMPS:
            assert self.n < 14
            self.a("s_memtime s[%d:%d]" % (60 + 2 * self.n, 61 + 2 * self.n))
            self.n += 1

    def dump(self, wave_sgpr=3):
        if not STAMPS:
            return
        a = self.a
        self.stamp()
        a("s_memrealtime s[58:59]")
        a("s_load_dwordx2 s[92:93], s[0:1], %d" % A_WS)
        a("s_waitcnt lgkmcnt(0)")
        a("s_mov_b64 exec, -1")
        a("s_mov_b32 s94, 0x2000000")
        a("s_mov_b32 s95, 0x20000")
        a("v_mov_b32 v250, 0")
        a("v_writelane_b32 v250, s56, 0")
        a("v_writelane_b32 v250, s58, 1")
        for i in range(self.n):
            a("v_writelane_b32 v250, s%d, %d" % (60 + 2 * i, 2 + i))
        a("s_getreg_b32 s56, hwreg(HW_REG_XCC_ID)")
        a("v_writelane_b32 v250, s56, 31")
        a("s_lshl_b32 s56, s2, 3")
        a("s_add_u32 s56, s56, s%d" % wave_sgpr)
        a("s_lshl_b32 s56, s56, 7")
        a("s_add_u32 s56, s56, %d" % (STAMP_BASE + self.k * 512 * 8 * 128))
        a("v_mbcnt_lo_u32_b32 v251, -1, 0")
        a("v_lshlrev_b32 v251, 2, v251")
        a("s_mov_b32 exec_hi, 0")
        a("buffer_store_dword v250, v251, s[92:95], s56 offen")


def bf16_round(a, dst, src, tmp=None):
    a("v_cvt_pk_bf16_f32 v%d, v%d, v%d" % (dst, src, src))
    a("v_lshlrev_b32 v%d, 16, v%d" % (dst, dst))


def wave_id(a, sdst, vtmp):
    a("v_lshrrev_b32 v%d, 6, v0" % vtmp)
    a("s_nop 0")
    a("v_readfirstlane_b32 s%d, v%d" % (sdst, vtmp))


K1_MOD, K1_STAT, K1_WQ, K1_WKV, K1_WO, K1_W1, K1_W2 = 0, 192, 256, 288, 296, 328, 416
K1_END = 504


def shuffle_body(a, lbl, karg, src_bytes, rs, lane_row, rowoff, dst, nks, decode, colbytes, nfr=4, frag_rows=16,
                 lanecol_mask=31, dst_calc=None):
    a.label(lbl)
    a("s_load_dwordx2 s[4:5], s[0:1], %d" % karg)
    decode(a)
    a("v_and_b32 v1, %d, v0" % lanecol_mask)
    a("v_lshlrev_b32 v1, 1, v1")
    lane_row(a)
    a("s_mov_b32 s33, %d" % rs)
    a("v_mul_lo_u32 v2, v2, s33")
    a("v_add_u32 v1, v1, v2")
    a("v_and_b32 v3, 63, v0")
    a("v_lshlrev_b32 v3, 4, v3")
    a("s_waitcnt lgkmcnt(0)")
    a.srd(8, 4, src_bytes)
    a.srd(12, 6, WS_SIZE)
    for f in range(nfr):
        for e in range(8):
            a("s_add_u32 s34, s30, %d" % (rowoff(f, e)))
            a.vmem("buffer_load_ushort v%d, v1, s[8:11], s34 offen" % (8 + 8 * f + e), ("f", f))
    for f in range(nfr):
        a.wait_vm(("f", f))
        for p in range(4):
            a("v_lshl_or_b32 v%d, v%d, 16, v%d" % (48 + 4 * f + p, 8 + 8 * f + 2 * p + 1, 8 + 8 * f + 2 * p))
    for f in range(nfr):
        if dst_calc:
            dst_calc(a, f)
        a("buffer_store_dwordx4 %s, v3, s[12:15], s31 offen offset:%d" % (vr(48 + 4 * f, 4), 1024 * f))
    a.vm = []
    a("s_endpgm")


def gen_k1():
    a = Asm()
    a("s_load_dwordx2 s[6:7], s[0:1], %d" % A_WS)
    wave_id(a, 3, 1)
    for lim, lbl in ((K1_STAT, "L_k1_mod"), (K1_WQ, "L_k1_stat"), (K1_WKV, "L_k1_wq"), (K1_WO, "L_k1_wkv"),
                     (K1_W1, "L_k1_wo"), (K1_W2, "L_k1_w1"), (K1_END, "L_k1_w2")):
        a("s_cmp_lt_u32 s2, %d" % lim)
        a("s_cbranch_scc1 %s" % lbl)
    a.label("L_k1_end")
    a("s_endpgm")

    a.label("L_k1_mod")
    a("s_load_dwordx4 s[16:19], s[0:1], %d" % A_C)
    a("""
    s_and_b32 s20, s2, 7
    s_lshr_b32 s21, s2, 3
    s_mul_i32 s20, s20, 6
    s_lshr_b32 s22, s21, 2
    s_add_u32 s20, s20, s22
    s_lshl_b32 s20, s20, 2
    s_and_b32 s21, s21, 3
    s_add_u32 s20, s20, s21
    s_lshl_b32 s21, s20, 5
    v_lshrrev_b32 v1, 1, v0
    v_mul_u32_u24 v2, 6144, v1
    v_and_b32 v3, 1, v0
    v_lshl_add_u32 v2, v3, 4, v2
    v_lshlrev_b32 v1, 1, v1
    s_waitcnt lgkmcnt(0)
    """)
    a.srd(8, 18, 512 * 6144)
    a.srd(12, 16, 1024)
    a.srd(24, 6, WS_SIZE)
    for i in range(4):
        a.vmem("buffer_load_ushort v%d, v1, s[12:15], 0 offen offset:%d" % (4 + i, 256 * i), "c")
    for i in range(4):
        a("s_add_u32 s22, s21, %d" % (i * 128 * 6144))
        a.vmem("buffer_load_dwordx4 %s, v2, s[8:11], s22 offen" % vr(8 + 4 * i, 4), ("w", i))
    a.wait_vm("c")
    a("s_mov_b32 s23, %s" % fhex(-LOG2E))
    for i in range(4):
        a("v_lshlrev_b32 v%d, 16, v%d" % (4 + i, 4 + i))
    for i in range(4):
        a("v_mul_f32 v%d, s23, v%d" % (24 + i, 4 + i))
    for i in range(4):
        a("v_exp_f32 v%d, v%d" % (24 + i, 24 + i))
    a("s_nop 0")
    for i in range(4):
        a("v_add_f32 v%d, 1.0, v%d" % (24 + i, 24 + i))
    for i in range(4):
        a("v_rcp_f32 v%d, v%d" % (24 + i, 24 + i))
    a("s_nop 0")
    for i in range(4):
        a("v_mul_f32 v%d, v%d, v%d" % (4 + i, 4 + i, 24 + i))
    for i in range(4):
        bf16_round(a, 4 + i, 4 + i)
    for i in range(4):
        a.wait_vm(("w", i))
        for p in range(4):
            a("v_lshlrev_b32 v28, 16, v%d" % (8 + 4 * i + p))
            a("v_and_b32 v29, 0xffff0000, v%d" % (8 + 4 * i + p))
            if i == 0:
                a("v_mul_f32 v%d, v28, v4" % (32 + 2 * p))
                a("v_mul_f32 v%d, v29, v4" % (33 + 2 * p))
            else:
                a("v_fmac_f32 v%d, v28, v%d" % (32 + 2 * p, 4 + i))
                a("v_fmac_f32 v%d, v29, v%d" % (33 + 2 * p, 4 + i))
    a("s_nop 1")
    for sh in (2, 4, 8):
        for j in range(8):
            a("v_add_f32_dpp v%d, v%d, v%d row_ror:%d row_mask:0xf bank_mask:0xf" % (32 + j, 32 + j, 32 + j, sh))
    a("""
    v_lshrrev_b32 v1, 4, v0
    v_lshlrev_b32 v1, 2, v1
    v_lshl_add_u32 v1, v3, 9, v1
    v_and_b32 v2, 15, v0
    v_cmp_gt_u32 vcc, 2, v2
    s_and_saveexec_b64 s[28:29], vcc
    """)
    for j in range(8):
        a("ds_write_b32 v1, v%d offset:%d" % (32 + j, 64 * j))
    a("""
    s_mov_b64 exec, s[28:29]
    s_waitcnt lgkmcnt(0)
    s_barrier
    s_cmp_lg_u32 s3, 0
    s_cbranch_scc1 L_k1_end
    v_and_b32 v2, 15, v0
    v_lshlrev_b32 v1, 6, v2
    ds_read_b128 v[8:11], v1
    ds_read_b128 v[12:15], v1 offset:16
    ds_read_b128 v[16:19], v1 offset:32
    ds_read_b128 v[20:23], v1 offset:48
    s_waitcnt lgkmcnt(0)
    """)
    for st in (8, 4, 2, 1):
        for j in range(st):
            a("v_add_f32 v%d, v%d, v%d" % (8 + j, 8 + j, 8 + j + st))
    bf16_round(a, 8, 8)
    a("""
    s_lshr_b32 s22, s20, 5
    s_cmp_eq_u32 s22, 1
    s_cselect_b32 s23, 1.0, 0
    s_cmp_eq_u32 s22, 4
    s_cselect_b32 s23, 1.0, s23
    v_add_f32 v8, s23, v8
    """)
    bf16_round(a, 8, 8)
    a("""
    s_lshl_b32 s22, s20, 6
    v_lshlrev_b32 v1, 2, v2
    v_cmp_gt_u32 vcc, 16, v0
    s_and_saveexec_b64 s[28:29], vcc
    buffer_store_dword v8, v1, s[24:27], s22 offen offset:%d
    s_endpgm
    """ % MOD)
    a.vm = []

    a.label("L_k1_stat")
    a("s_load_dwordx2 s[4:5], s[0:1], %d" % A_X)
    a("""
    s_sub_u32 s20, s2, %d
    s_and_b32 s21, s20, 7
    s_lshr_b32 s20, s20, 3
    s_lshl_b32 s21, s21, 8
    s_lshl_b32 s20, s20, 5
    s_add_u32 s20, s20, s21
    s_lshl_b32 s21, s3, 3
    s_add_u32 s20, s20, s21
    s_lshl_b32 s21, s20, 10
    s_add_u32 s22, s21, 4096
    v_and_b32 v1, 63, v0
    v_lshlrev_b32 v2, 4, v1
    s_waitcnt lgkmcnt(0)
    """ % K1_STAT)
    a.srd(8, 4, 2048 * 1024)
    a.srd(12, 6, WS_SIZE)
    for r in range(8):
        a.vmem("buffer_load_dwordx4 %s, v2, s[8:11], s%d offen offset:%d" % (vr(8 + 4 * r, 4), 21 + (r >> 2), 1024 * (r & 3)), ("x", r))
    U = 48
    for r in range(8):
        a.wait_vm(("x", r))
        for p in range(4):
            a("v_lshlrev_b32 v%d, 16, v%d" % (U + 8 * r + 2 * p, 8 + 4 * r + p))
            a("v_and_b32 v%d, 0xffff0000, v%d" % (U + 8 * r + 2 * p + 1, 8 + 4 * r + p))
        a("v_add_f32 v%d, v%d, v%d" % (112 + r, U + 8 * r, U + 8 * r + 1))
        for e in range(2, 8):
            a("v_add_f32 v%d, v%d, v%d" % (112 + r, 112 + r, U + 8 * r + e))
    a("s_nop 1")
    dpp_reduce63(a, [112 + r for r in range(8)])
    for r in range(8):
        a("v_mul_f32 v%d, %s, v%d" % (112 + r, fhex(1.0 / 512), 112 + r))
    for r in range(8):
        a("v_readlane_b32 s%d, v%d, 63" % (32 + r, 112 + r))
    a("s_nop 1")
    for r in range(8):
        for e in range(8):
            a("v_subrev_f32 v%d, s%d, v%d" % (U + 8 * r + e, 32 + r, U + 8 * r + e))
        a("v_mul_f32 v%d, v%d, v%d" % (112 + r, U + 8 * r, U + 8 * r))
        for e in range(1, 8):
            a("v_fmac_f32 v%d, v%d, v%d" % (112 + r, U + 8 * r + e, U + 8 * r + e))
    a("s_nop 1")
    dpp_reduce63(a, [112 + r for r in range(8)])
    a("s_nop 0")
    for r in range(8):
        a("v_readlane_b32 s%d, v%d, 63" % (40 + r, 112 + r))
    a("v_mov_b32 v4, 0")
    a("v_mov_b32 v5, 1.0")
    a("s_nop 1")
    for r in range(8):
        a("v_writelane_b32 v4, s%d, %d" % (32 + r, r))
        a("v_writelane_b32 v5, s%d, %d" % (40 + r, r))
    a("v_mul_f32 v5, %s, v5" % fhex(1.0 / 512))
    bf16_round(a, 4, 4)
    bf16_round(a, 5, 5)
    a("v_add_f32 v5, %s, v5" % fhex(1e-5))
    bf16_round(a, 5, 5)
    a("v_sqrt_f32 v5, v5")
    a("s_nop 0")
    bf16_round(a, 5, 5)
    a("v_rcp_f32 v6, v5")
    a("s_nop 0")
    a("v_mul_f32 v7, v4, v6")
    a("v_sub_f32 v7, 0, v7")
    a("""
    s_lshl_b32 s21, s20, 3
    s_add_u32 s21, s21, %d
    v_lshlrev_b32 v2, 3, v1
    v_cmp_gt_u32 vcc, 8, v1
    s_and_saveexec_b64 s[28:29], vcc
    buffer_store_dwordx2 v[6:7], v2, s[12:15], s21 offen
    s_endpgm
    """ % STAT)
    a.vm = []

    def lane_nat(a):
        a("v_bfe_u32 v2, v0, 5, 1")
        a("v_lshlrev_b32 v2, 3, v2")

    def lane_pi(a):
        a("v_bfe_u32 v2, v0, 5, 1")
        a("v_lshlrev_b32 v2, 2, v2")

    def dec_wq(a):
        a("""
        s_sub_u32 s20, s2, %d
        s_and_b32 s21, s20, 7
        s_lshr_b32 s20, s20, 3
        s_lshl_b32 s20, s20, 2
        s_add_u32 s20, s20, s3
        s_lshl_b32 s30, s21, 16
        s_lshl_b32 s22, s20, 6
        s_add_u32 s30, s30, s22
        s_lshl_b32 s31, s20, 15
        s_lshl_b32 s22, s21, 12
        s_add_u32 s31, s31, s22
        s_add_u32 s31, s31, %d
        """ % (K1_WQ, WQF))
    shuffle_body(a, "L_k1_wq", A_WQ, 512 * 1024, 1024, lane_nat, lambda f, e: (16 * f + e) * 1024, WQF, 32, dec_wq, 64)

    def dec_w1(a):
        a("""
        s_sub_u32 s20, s2, %d
        s_and_b32 s21, s20, 7
        s_lshr_b32 s20, s20, 3
        s_lshl_b32 s20, s20, 2
        s_add_u32 s20, s20, s3
        s_cmp_ge_u32 s20, 43
        s_cbranch_scc1 L_k1_end
        s_mul_i32 s30, s21, %d
        s_lshl_b32 s22, s20, 6
        s_add_u32 s30, s30, s22
        s_lshl_b32 s31, s20, 15
        s_lshl_b32 s22, s21, 12
        s_add_u32 s31, s31, s22
        s_add_u32 s31, s31, %d
        """ % (K1_W1, 64 * 2752, W1F))
    shuffle_body(a, "L_k1_w1", A_W1, 512 * 2752, 2752, lane_nat, lambda f, e: (16 * f + e) * 2752, W1F, 32, dec_w1, 64)

    def dec_w2(a):
        a("""
        s_sub_u32 s20, s2, %d
        s_lshr_b32 s21, s20, 2
        s_and_b32 s20, s20, 3
        s_lshl_b32 s20, s20, 2
        s_add_u32 s20, s20, s3
        s_lshl_b32 s30, s21, 16
        s_lshl_b32 s22, s20, 6
        s_add_u32 s30, s30, s22
        s_mul_i32 s31, s20, %d
        s_lshl_b32 s22, s21, 12
        s_add_u32 s31, s31, s22
        s_add_u32 s31, s31, %d
        """ % (K1_W2, 86 * 1024, W2F))

    def w2_guard(a, f):
        if f == 2:
            a("s_cmp_eq_u32 s21, 21")
            a("s_cbranch_scc1 L_k1_end")
    shuffle_body(a, "L_k1_w2", A_W2, 1376 * 1024, 1024, lane_pi,
                 lambda f, e: (16 * f + (e & 3) + 8 * (e >> 2)) * 1024, W2F, 86, dec_w2, 64, dst_calc=w2_guard)

    def dec_wo(a):
        a("""
        s_sub_u32 s20, s2, %d
        s_and_b32 s21, s20, 7
        s_lshr_b32 s20, s20, 3
        s_lshl_b32 s20, s20, 2
        s_add_u32 s20, s20, s3
        s_lshl_b32 s30, s21, 16
        s_lshl_b32 s22, s20, 6
        s_add_u32 s30, s30, s22
        s_lshl_b32 s31, s21, 16
        s_lshl_b32 s22, s20, 12
        s_add_u32 s31, s31, s22
        s_add_u32 s31, s31, %d
        """ % (K1_WO, WOF))

    def lane_wo(a):
        a("v_bfe_u32 v2, v0, 5, 1")
        a("v_lshlrev_b32 v2, 4, v2")
        a("v_bfe_u32 v4, v0, 4, 1")
        a("v_lshl_add_u32 v2, v4, 2, v2")
    shuffle_body(a, "L_k1_wo", A_WO, 512 * 1024, 1024, lane_wo,
                 lambda f, e: (32 * (f & 1) + 8 * ((e >> 1) & 1) + 2 * (e >> 2) + (e & 1)) * 1024 + 32 * (f >> 1),
                 WOF, 0, dec_wo, 32, lanecol_mask=15)

    a.label("L_k1_wkv")
    a("s_load_dwordx4 s[16:19], s[0:1], %d" % A_WK)
    a("""
    s_sub_u32 s20, s2, %d
    s_cmp_ge_u32 s20, 2
    s_cbranch_scc1 L_k1_end
    s_lshl_b32 s20, s20, 2
    s_add_u32 s20, s20, s3
    s_lshl_b32 s30, s20, 11
    s_lshl_b32 s31, s20, 12
    s_add_u32 s31, s31, %d
    v_and_b32 v1, 15, v0
    v_lshlrev_b32 v1, 1, v1
    v_bfe_u32 v2, v0, 5, 1
    v_lshl_add_u32 v1, v2, 8, v1
    v_and_b32 v3, 63, v0
    v_lshlrev_b32 v3, 4, v3
    s_waitcnt lgkmcnt(0)
    """ % (K1_WKV, WKVF))
    a.srd(8, 16, 16384)
    a.srd(24, 18, 16384)
    a.srd(12, 6, WS_SIZE)
    for srd, mask in ((8, 0x0000ffff), (24, 0xffff0000)):
        a("s_mov_b32 exec_lo, 0x%x" % mask)
        a("s_mov_b32 exec_hi, 0x%x" % mask)
        for f in range(4):
            for e in range(8):
                a("buffer_load_ushort v%d, v1, s[%d:%d], s30 offen offset:%d" % (8 + 8 * f + e, srd, srd + 3, (16 * f + e) * 32))
        a("s_waitcnt vmcnt(0)")
    a("s_mov_b64 exec, -1")
    for f in range(4):
        for p in range(4):
            a("v_lshl_or_b32 v%d, v%d, 16, v%d" % (48 + 4 * f + p, 8 + 8 * f + 2 * p + 1, 8 + 8 * f + 2 * p))
    for f in range(4):
        a("buffer_store_dwordx4 %s, v3, s[12:15], s31 offen offset:%d" % (vr(48 + 4 * f, 4), 1024 * f))
    a("s_endpgm")
    return a.text(), 120


def gen_k2():
    a = Asm()
    W = 64
    XR = 8
    G, SA = 40, 48
    ACC = 192
    a("s_cmp_ge_u32 s2, 256")
    a("s_cbranch_scc1 L_k2_end")
    st = Stamper(a, 1)
    st.start()
    a("s_load_dwordx2 s[4:5], s[0:1], %d" % A_X)
    a("s_load_dwordx2 s[6:7], s[0:1], %d" % A_WS)
    wave_id(a, 3, 1)
    a("""
    s_and_b32 s20, s2, 7
    s_lshr_b32 s21, s2, 3
    s_lshr_b32 s22, s21, 2
    s_and_b32 s21, s21, 3
    s_lshl_b32 s20, s20, 3
    s_add_u32 s20, s20, s22
    s_lshl_b32 s22, s22, 2
    v_and_b32 v1, 63, v0
    v_lshlrev_b32 v2, 4, v1
    """)
    a("s_cmp_lt_u32 s3, 4")
    a("s_cbranch_scc1 L_k2_q")
    a("s_cmp_lg_u32 s21, 0")
    a("s_cbranch_scc1 L_k2_end")
    a("s_mov_b32 s23, %d" % WKVF)
    a("s_waitcnt lgkmcnt(0)")
    a.srd(12, 6, WS_SIZE)
    a("s_branch L_k2_loadw")
    a.label("L_k2_q")
    a("""
    s_lshl_b32 s24, s21, 2
    s_add_u32 s24, s24, s3
    s_lshl_b32 s23, s24, 15
    s_add_u32 s23, s23, %d
    s_lshl_b32 s25, s20, 5
    s_lshl_b32 s26, s3, 3
    s_add_u32 s25, s25, s26
    s_lshl_b32 s26, s25, 10
    s_add_u32 s27, s26, 4096
    s_lshl_b32 s28, s25, 3
    s_add_u32 s28, s28, %d
    v_lshlrev_b32 v3, 5, v1
    s_waitcnt lgkmcnt(0)
    s_load_dwordx16 s[32:47], s[6:7], s28
    """ % (WQF, STAT))
    a.srd(8, 4, 2048 * 1024)
    a.srd(12, 6, WS_SIZE)
    for r in range(8):
        a.vmem("buffer_load_dwordx4 %s, v2, s[8:11], s%d offen offset:%d" % (vr(XR + 4 * r, 4), 26 + (r >> 2), 1024 * (r & 3)), ("x", r))
        if r == 0:
            a.vmem("buffer_load_dwordx4 %s, v3, s[12:15], 0 offen offset:%d" % (vr(SA, 4), MOD), ("x", 0))
            a.vmem("buffer_load_dwordx4 %s, v3, s[12:15], 0 offen offset:%d" % (vr(SA + 4, 4), MOD + 16), ("x", 0))
            a.vmem("buffer_load_dwordx4 %s, v3, s[12:15], 0 offen offset:%d" % (vr(G, 4), MOD + 2048), ("x", 0))
            a.vmem("buffer_load_dwordx4 %s, v3, s[12:15], 0 offen offset:%d" % (vr(G + 4, 4), MOD + 2048 + 16), ("x", 0))
    a.label("L_k2_loadw")
    for c in range(8):
        a("s_add_u32 s29, s22, %d" % (4 * c))
        a("s_and_b32 s29, s29, 31")
        a("s_lshl_b32 s29, s29, 10")
        a("s_add_u32 s29, s29, s23")
        for q in range(4):
            a.vmem("buffer_load_dwordx4 %s, v2, s[12:15], s29 offen offset:%d" % (vr(W + 16 * c + 4 * q, 4), 1024 * q), ("w", 4 * c + q))
    a("v_and_b32 v56, 31, v0")
    a("v_bfe_u32 v57, v0, 5, 1")
    for q in range(4):
        a("v_add_u32 v58, %d, v57" % (2 * q))
        a("v_xor_b32 v58, v58, v56")
        a("v_lshlrev_b32 v58, 4, v58")
        a("v_lshl_add_u32 v%d, v57, 9, v58" % (4 + q))
    a("s_cmp_eq_u32 s3, 4")
    a("s_cbranch_scc1 L_k2_bar")
    a("""
    v_lshrrev_b32 v58, 1, v1
    v_subrev_u32 v58, s22, v58
    v_and_b32 v58, 31, v58
    v_lshlrev_b32 v58, 10, v58
    v_and_b32 v59, 1, v1
    v_lshl_add_u32 v58, v59, 9, v58
    s_lshl_b32 s29, s3, 7
    v_add_u32 v58, s29, v58
    v_and_b32 v59, 7, v1
    v_lshlrev_b32 v59, 4, v59
    s_waitcnt lgkmcnt(0)
    """)
    st.stamp()
    for r in range(8):
        a.wait_vm(("x", r))
        if r == 0:
            st.stamp()
        sp = sr(32 + 2 * r, 2)
        for p in range(4):
            x = XR + 4 * r + p
            t = 60 + 2 * (p & 1)
            a("v_lshlrev_b32 v%d, 16, v%d" % (t, x))
            a("v_and_b32 v%d, 0xffff0000, v%d" % (t + 1, x))
            a("v_pk_fma_f32 %s, %s, %s, %s op_sel:[0,0,1] op_sel_hi:[1,0,1]" % (vr(t, 2), vr(t, 2), sp, sp))
            a("v_pk_fma_f32 %s, %s, %s, %s" % (vr(t, 2), vr(t, 2), vr(G + 2 * p, 2), vr(SA + 2 * p, 2)))
            a("v_cvt_pk_bf16_f32 v%d, v%d, v%d" % (x, t, t + 1))
        a("v_xor_b32 v56, %d, v59" % (16 * r))
        a("v_add_u32 v56, v56, v58")
        a("ds_write_b128 v56, %s" % vr(XR + 4 * r, 4))
    a("s_waitcnt lgkmcnt(0)")
    st.stamp()
    a.label("L_k2_bar")
    a("s_barrier")
    st.stamp()
    if STAMPS:
        a("s_waitcnt lgkmcnt(0)")
    for i in range(8):
        a.ds("ds_read_b128 %s, v%d offset:%d" % (vr(XR + 4 * i, 4), 4 + (i & 3), 1024 * i), ("h", i))
    for i in range(32):
        a.wait_vm(("w", i))
        a.wait_lg(("h", i))
        a("v_mfma_f32_32x32x16_bf16 %s, %s, %s, %s" % (vr(ACC, 16), vr(W + 4 * i, 4), vr(XR + 4 * (i & 7), 4), "0" if i == 0 else vr(ACC, 16)))
        if i + 8 < 32 and i >= 1:
            k = i + 7
            a.ds("ds_read_b128 %s, v%d offset:%d" % (vr(XR + 4 * (k & 7), 4), 4 + (k & 3), 1024 * k), ("h", k))
        if i == 24:
            k = 31
            a.ds("ds_read_b128 %s, v%d offset:%d" % (vr(XR + 4 * (k & 7), 4), 4 + (k & 3), 1024 * k), ("h", k))
    st.stamp()
    a("s_cmp_eq_u32 s3, 4")
    a("s_cselect_b32 s30, 1.0, %s" % fhex(QSCALE))
    a("v_and_b32 v56, 31, v0")
    a("v_bfe_u32 v57, v0, 5, 1")
    a("s_nop 10")
    for r in range(16):
        a("v_mul_f32 v%d, s30, v%d" % (ACC + r, ACC + r))
    a("v_mul_f32 v60, v%d, v%d" % (ACC, ACC))
    a("v_mul_f32 v61, v%d, v%d" % (ACC + 8, ACC + 8))
    for r in range(1, 8):
        a("v_fmac_f32 v60, v%d, v%d" % (ACC + r, ACC + r))
        a("v_fmac_f32 v61, v%d, v%d" % (ACC + 8 + r, ACC + 8 + r))
    for p in range(8):
        a("v_cvt_pk_bf16_f32 v%d, v%d, v%d" % (XR + p, ACC + 2 * p, ACC + 2 * p + 1))
    a("v_permlane32_swap_b32 v60, v61")
    a("v_add_f32 v60, v60, v61")
    a("s_cmp_eq_u32 s3, 4")
    a("s_cbranch_scc1 L_k2_kv")
    a("""
    v_lshrrev_b32 v58, 3, v56
    v_lshlrev_b32 v58, 13, v58
    v_lshl_add_u32 v58, v57, 9, v58
    v_and_b32 v59, 7, v56
    v_lshl_add_u32 v58, v59, 4, v58
    s_lshl_b32 s29, s20, 15
    s_lshr_b32 s31, s24, 1
    s_lshl_b32 s31, s31, 10
    s_add_u32 s29, s29, s31
    s_and_b32 s31, s24, 1
    s_lshl_b32 s31, s31, 8
    s_add_u32 s29, s29, s31
    s_add_u32 s29, s29, %d
    buffer_store_dwordx4 %s, v58, s[12:15], s29 offen
    buffer_store_dwordx4 %s, v58, s[12:15], s29 offen offset:128
    """ % (QF, vr(XR, 4), vr(XR + 4, 4)))
    dpp_reduce63(a, [60], op="v_max_f32")
    a("""
    s_lshl_b32 s29, s20, 4
    s_add_u32 s29, s29, s24
    s_lshl_b32 s29, s29, 2
    s_add_u32 s29, s29, %d
    v_mov_b32 v58, 0
    s_mov_b32 exec_lo, 0
    s_mov_b32 exec_hi, 0x80000000
    buffer_store_dword v60, v58, s[12:15], s29 offen
    """ % NQ)
    st.dump()
    a("s_endpgm")
    a.label("L_k2_kv")
    a("""
    s_lshl_b32 s29, s20, 10
    s_add_u32 s31, s29, %d
    s_add_u32 s29, s29, %d
    buffer_store_dwordx4 %s, v2, s[12:15], s29 offen
    v_lshrrev_b32 v58, 3, v56
    v_lshlrev_b32 v58, 8, v58
    v_lshl_add_u32 v58, v57, 6, v58
    v_and_b32 v59, 7, v56
    v_lshl_add_u32 v58, v59, 1, v58
    """ % (VF, KF, vr(XR, 4)))
    for r in range(8):
        off = ((r & 3) + 8 * (r >> 2)) * 16
        op = "buffer_store_short" if r % 2 == 0 else "buffer_store_short_d16_hi"
        a("%s v%d, v58, s[12:15], s31 offen offset:%d" % (op, XR + 4 + (r >> 1), off))
    dpp_reduce63(a, [60], op="v_max_f32", upto32=True)
    a("""
    s_lshl_b32 s29, s20, 3
    s_add_u32 s29, s29, %d
    v_lshlrev_b32 v58, 2, v57
    s_mov_b32 exec_lo, 0x80000000
    s_mov_b32 exec_hi, 0x80000000
    buffer_store_dword v60, v58, s[12:15], s29 offen
    """ % NKV)
    a.label("L_k2_end")
    a("s_endpgm")
    return a.text(), 256 if STAMPS else 208


L_ACC = 0
L_AF = 18432
L_XB = L_AF + 8192
L_MX = L_XB + 8 * 2064
K3_LDS = L_MX + 1024


def gen_k3():
    a = Asm()
    KR, VR_, QR, S0, O0, WO, XA, AF, ZR, CR = 16, 48, 112, 120, 152, 184, 216, 232, 236, 240
    IDXP, IDXO = 14, 15
    V_LANE16, V_VOFF, V_ACCA, V_AFW, V_XROW = 2, 3, 4, 5, 8
    V_FL = 7
    S = lambda t: S0 + 16 * (t & 1)
    O = lambda j: O0 + 16 * (j & 1)
    Q = lambda j: QR + 4 * (j & 1)

    a("s_cmp_ge_u32 s2, 256")
    a("s_cbranch_scc1 L_k3_end")
    st = Stamper(a, 2)
    st.start()
    a("s_load_dwordx2 s[4:5], s[0:1], %d" % A_X)
    a("s_load_dwordx2 s[6:7], s[0:1], %d" % A_WS)
    wave_id(a, 3, 1)
    a("""
    s_and_b32 s20, s2, 7
    s_lshr_b32 s21, s2, 3
    s_lshl_b32 s20, s20, 5
    s_add_u32 s20, s20, s21
    v_and_b32 v1, 63, v0
    v_lshlrev_b32 v2, 4, v1
    v_and_b32 v6, 15, v0
    v_bfe_u32 v7, v0, 5, 1
    v_lshlrev_b32 v3, 4, v6
    v_lshl_add_u32 v3, v7, 8, v3
    v_lshlrev_b32 v4, 2, v1
    """)
    for r in range(4):
        a("v_mov_b32 v%d, 0" % (ZR + r))
    a("v_lshlrev_b32 v13, 2, v0")
    a("v_mov_b32 v12, 0xff800000")
    a("v_and_b32 v13, 0x3fc, v13")
    a("ds_write_b32 v13, v12 offset:%d" % L_MX)
    for r in range(64):
        a("v_mov_b32 v%d, 0x3f803f80" % (VR_ + r))
    for r in range(16):
        a("v_mov_b32 v%d, 0" % (XA + r))
    a("v_mov_b32 v%d, 0xdddd" % IDXP)
    a("v_bfe_u32 v12, v0, 3, 1")
    a("v_mul_u32_u24 v12, 0xaaaa, v12")
    a("v_add_u32 v%d, 0x4444, v12" % IDXO)
    a("""
    v_and_b32 v12, 7, v0
    v_bfe_u32 v13, v0, 3, 2
    v_lshl_add_u32 v12, v13, 4, v12
    v_lshlrev_b32 v12, 4, v12
    v_lshl_add_u32 v12, v7, 3, v12
    s_lshr_b32 s21, s3, 2
    s_lshl_b32 s21, s21, 7
    s_and_b32 s22, s3, 3
    s_lshl_b32 s22, s22, 1
    s_add_u32 s21, s21, s22
    v_add_u32 v5, s21, v12
    s_lshl_b32 s21, s20, 13
    s_add_u32 s21, s21, %d
    s_lshl_b32 s22, s3, 13
    s_add_u32 s23, s22, %d
    s_add_u32 s24, s23, 4096
    s_add_u32 s25, s22, %d
    s_add_u32 s26, s25, 4096
    s_add_u32 s27, s22, %d
    s_lshr_b32 s28, s20, 2
    s_lshl_b32 s28, s28, 6
    s_add_u32 s28, s28, %d
    s_lshl_b32 s29, s20, 3
    s_add_u32 s29, s29, s3
    s_lshl_b32 s30, s29, 10
    v_lshlrev_b32 v12, 3, v1
    s_waitcnt lgkmcnt(0)
    s_load_dwordx16 s[32:47], s[6:7], s28
    """ % (QF, KF, VF, WOF, NQ))
    a.srd(8, 4, 2048 * 1024)
    a.srd(12, 6, WS_SIZE)
    a("s_mov_b32 s31, %d" % NKV)
    a.vmem("buffer_load_dwordx2 v[6:7], v12, s[12:15], s31 offen", "nkv")
    a.vmem("buffer_load_dwordx4 %s, v2, s[12:15], s21 offen" % vr(Q(0), 4), ("q", 0))
    for t in range(8):
        a.vmem("buffer_load_dwordx4 %s, v2, s[12:15], s%d offen offset:%d" % (vr(KR + 4 * t, 4), 23 + (t >> 2), 1024 * (t & 3)), ("k", t))
        a("s_mov_b32 exec_lo, 0xffff")
        a("s_mov_b32 exec_hi, 0xffff")
        for u in range(2):
            a.vmem("buffer_load_dwordx4 %s, v3, s[12:15], s%d offen offset:%d" % (vr(VR_ + 8 * t + 4 * u, 4), 25 + (t >> 2), 1024 * (t & 3) + 512 * u), ("v", t))
        a("s_mov_b64 exec, -1")
    a.vmem("buffer_load_dwordx4 %s, v2, s[12:15], s21 offen offset:1024" % vr(Q(1), 4), ("q", 1))

    def load_wo(j):
        a("s_add_u32 s48, s27, %d" % (65536 * j))
        a("s_add_u32 s49, s48, 4096")
        for f in range(8):
            a.vmem("buffer_load_dwordx4 %s, v2, s[12:15], s%d offen offset:%d" % (vr(WO + 4 * f, 4), 48 + (f >> 2), 1024 * (f & 3)), ("wo", j))
    load_wo(0)
    a.vmem("buffer_load_dwordx4 %s, v2, s[8:11], s30 offen" % vr(V_XROW, 4), "xrow")
    a("s_waitcnt lgkmcnt(0)")
    a("s_barrier")
    for i in range(1, 16):
        a("s_max_u32 s32, s32, s%d" % (32 + i))
    a.wait_vm("nkv")
    a("v_mul_f32 v6, s32, v6")
    a("v_cmp_ge_f32 vcc, %s, v6" % fhex((TBOUND / 1.02) ** 2))
    a("s_mov_b64 s[34:35], vcc")
    a("v_cmp_ge_f32 vcc, %s, v7" % fhex(2.0 ** 80))
    a("s_and_b64 s[34:35], s[34:35], vcc")
    a("v_cmp_le_f32 vcc, %s, v7" % fhex(2.0 ** -80))
    a("s_cmp_eq_u64 vcc, 0")
    a("s_cbranch_scc1 L_k3_slow")
    a("s_cmp_eq_u64 s[34:35], -1")
    if FORCE_SLOW:
        a("s_branch L_k3_slow")
    a("s_cbranch_scc0 L_k3_slow")
    vm_entry = list(a.vm)

    def qk(t, slow):
        j, tt = t >> 3, t & 7
        a.wait_vm(("q", j))
        a.wait_vm(("k", tt))
        a("v_mfma_f32_32x32x16_bf16 %s, %s, %s, %s" % (vr(S(t), 16), vr(KR + 4 * tt, 4), vr(Q(j), 4), vr(CR, 16) if slow else "0"))

    def pv(t, u):
        j, tt = t >> 3, t & 7
        a.wait_vm(("v", tt))
        a("v_smfmac_f32_32x32x32_bf16 %s, %s, %s, v%d" % (vr(O(j), 16), vr(VR_ + 8 * tt + 4 * u, 4), vr(S(t) + 8 * u, 8), IDXP))

    def zero_o(j):
        a("v_mfma_f32_32x32x16_bf16 %s, %s, %s, 0" % (vr(O(j), 16), vr(ZR, 4), vr(ZR, 4)))

    def flush(j):
        for r in range(0, 8, 2):
            a.ds("ds_write2st64_b32 v%d, v%d, v%d offset0:%d offset1:%d" % (V_FL, O(j) + r, O(j) + r + 1, r, r + 1), "add")
        a.ds("ds_write_b32 v%d, v%d offset:2048" % (V_FL, O(j) + 8), "add")

    def norm_read(j):
        a.wait_lg_all()
        a("s_barrier")
        for i in range(4):
            a.ds("ds_read2st64_b32 %s, v%d offset0:%d offset1:%d" % (vr(O(j) + 8 + 2 * i, 2), V_ACCA, 18 * i + 8, 18 * i + 17), "nr")
        for i in range(4):
            a.ds("ds_read2st64_b32 %s, v13 offset0:%d offset1:%d" % (vr(O(j) + 2 * i, 2), 18 * i, 18 * i + 9), "nr")

    def norm_a(j):
        a.wait_lg_all()
        o = O(j)
        for b in (o + 8, o):
            a("v_pk_add_f32 %s, %s, %s" % (vr(b, 2), vr(b, 2), vr(b + 2, 2)))
            a("v_pk_add_f32 %s, %s, %s" % (vr(b + 4, 2), vr(b + 4, 2), vr(b + 6, 2)))
        a("v_pk_add_f32 %s, %s, %s" % (vr(o + 8, 2), vr(o + 8, 2), vr(o + 12, 2)))
        a("v_pk_add_f32 %s, %s, %s" % (vr(o, 2), vr(o, 2), vr(o + 4, 2)))
        a("v_add_f32 v%d, v%d, v%d" % (o + 8, o + 8, o + 9))
        a("v_rcp_f32 v%d, v%d" % (o + 8, o + 8))
        a("v_add_f32 v%d, v%d, v%d" % (o, o, o + 1))

    def norm_b(j):
        o = O(j)
        a("v_mul_f32 v%d, v%d, v%d" % (o, o, o + 8))
        a("v_cvt_pk_bf16_f32 v%d, v%d, v%d" % (o, o, o))
        a.ds("ds_write_b16 v%d, v%d offset:%d" % (V_AFW, o, L_AF + 1024 * j), "afw")

    def af_read(j):
        a.wait_lg_all()
        a("s_barrier")
        a.ds("ds_read_b128 %s, v2 offset:%d" % (vr(AF, 4), L_AF + 1024 * j), "af")

    def wo_mm(j, t4):
        if t4 == 0:
            a.wait_lg_all()
            a.wait_vm(("wo", j))
        a("v_smfmac_f32_16x16x64_bf16 %s, %s, %s, v%d" % (vr(XA + 4 * t4, 4), vr(AF, 4), vr(WO + 8 * t4, 8), IDXO))

    def load_c(j):
        a.ds("ds_read_b32 v%d, v12 offset:%d" % (CR, L_MX + 128 * j), "mx")
        a.wait_lg_all()
        a("v_sub_f32 v%d, 0, v%d" % (CR, CR))
        for r in range(1, 16):
            a("v_mov_b32 v%d, v%d" % (CR + r, CR))
        a("s_nop 1")

    def main(slow):
        a("s_lshl_b32 s50, s3, 8")
        a("v_add_u32 v13, s50, v4")
        a("s_mul_i32 s51, s3, 2304")
        a("v_add_u32 v%d, s51, v4" % V_FL)
        if slow:
            load_c(0)
        zero_o(0)
        qk(0, slow)
        a("s_nop 11")
        for t in range(64):
            j, tt = t >> 3, t & 7
            if tt == 0 and not slow:
                st.stamp()
            ev = {}

            def at(p, f):
                ev.setdefault(p, []).append(f)
            if t > 0:
                at(2, lambda: pv(t - 1, 1))
            if t + 1 < 64:
                if slow and tt == 7:
                    at(5, lambda: load_c(j + 1))
                at(5, lambda: qk(t + 1, slow))
            at(11, lambda: pv(t, 0))
            if tt == 7 and j < 7:
                at(14, lambda: zero_o(j + 1))
            if tt == 0 and j + 1 < 8 and j >= 1:
                at(8, lambda: a.vmem("buffer_load_dwordx4 %s, v2, s[12:15], s%d offen offset:%d" % (
                    vr(Q(j + 1), 4), 21 if j + 1 < 4 else 22, 1024 * ((j + 1) & 3)), ("q", j + 1)))
            if j >= 1:
                g = j - 1
                if tt == 1:
                    at(0, lambda: flush(g))
                if tt == 2:
                    at(8, lambda: norm_read(g))
                if tt == 3:
                    at(0, lambda: norm_a(g))
                    at(1, lambda: norm_b(g))
                if tt == 4:
                    at(8, lambda: af_read(g))
                if tt == 5:
                    at(0, lambda: wo_mm(g, 0))
                    at(8, lambda: wo_mm(g, 1))
                    at(14, lambda: wo_mm(g, 2))
                if tt == 6:
                    at(0, lambda: wo_mm(g, 3))
                    at(8, lambda: load_wo(g + 1))
            for p in range(16):
                for f in ev.get(p, []):
                    f()
                a("v_exp_f32 v%d, v%d" % (S(t) + p, S(t) + p))
        a("s_nop 1")
        pv(63, 1)

    a("s_add_u32 s22, s21, 4096")
    main(False)
    vm_exit = list(a.vm)
    a.label("L_k3_tail")
    st.stamp()
    a("v_lshlrev_b32 v12, 5, v1")
    a("s_mov_b32 s31, %d" % (MOD + 4096))
    for i, off in enumerate((0, 2048, 4096)):
        if off == 4096:
            a("s_mov_b32 s31, %d" % (MOD + 8192))
            off = 0
        a.vmem("buffer_load_dwordx4 %s, v12, s[12:15], s31 offen offset:%d" % (vr(KR + 8 * i, 4), off), "mod")
        a.vmem("buffer_load_dwordx4 %s, v12, s[12:15], s31 offen offset:%d" % (vr(KR + 8 * i + 4, 4), off + 16), "mod")
    a("s_nop 3")
    flush(7)
    norm_read(7)
    norm_a(7)
    a("s_nop 0")
    norm_b(7)
    af_read(7)
    for t4 in range(4):
        wo_mm(7, t4)
    a("""
    v_and_b32 v6, 15, v0
    v_bfe_u32 v7, v0, 5, 1
    v_lshl_add_u32 v6, v7, 4, v6
    v_lshlrev_b32 v6, 2, v6
    v_bfe_u32 v7, v0, 4, 1
    v_mul_u32_u24 v7, %d, v7
    v_add_u32 v6, v6, v7
    v_add_u32 v6, s50, v6
    s_nop 2
    """ % (4 * 2064))
    for p in range(2):
        for r in range(4):
            a("v_permlane32_swap_b32 v%d, v%d" % (XA + 8 * p + r, XA + 8 * p + 4 + r))
    for p in range(2):
        for r in range(4):
            a("v_add_f32 v%d, v%d, v%d" % (XA + 8 * p + r, XA + 8 * p + r, XA + 8 * p + 4 + r))
    for p in range(2):
        for r in range(4):
            a.ds("ds_write_b32 v6, v%d offset:%d" % (XA + 8 * p + r, L_XB + 2064 * r + 128 * p))
    a("s_mul_i32 s50, s3, 2064")
    a("v_add_u32 v6, s50, v12")
    a.wait_lg_all()
    a("s_barrier")
    A_ = S0
    X_ = S0 + 8
    a("ds_read_b128 %s, v6 offset:%d" % (vr(A_, 4), L_XB))
    a("ds_read_b128 %s, v6 offset:%d" % (vr(A_ + 4, 4), L_XB + 16))
    a.wait_vm_all()
    for p in range(4):
        a("v_lshlrev_b32 v%d, 16, v%d" % (X_ + 2 * p, V_XROW + p))
        a("v_and_b32 v%d, 0xffff0000, v%d" % (X_ + 2 * p + 1, V_XROW + p))
    a("s_waitcnt lgkmcnt(0)")
    GA, SB, G2 = KR, KR + 8, KR + 16
    for e in range(8):
        a("v_fma_f32 v%d, v%d, v%d, v%d" % (A_ + e, A_ + e, GA + e, X_ + e))
    for p in range(4):
        a("v_cvt_pk_bf16_f32 v%d, v%d, v%d" % (V_XROW + p, A_ + 2 * p, A_ + 2 * p + 1))
    a("s_add_u32 s31, s30, %d" % X1)
    a("buffer_store_dwordx4 %s, v2, s[12:15], s31 offen" % vr(V_XROW, 4))
    for p in range(4):
        a("v_lshlrev_b32 v%d, 16, v%d" % (A_ + 2 * p, V_XROW + p))
        a("v_and_b32 v%d, 0xffff0000, v%d" % (A_ + 2 * p + 1, V_XROW + p))
    a("v_add_f32 v6, v%d, v%d" % (A_, A_ + 1))
    a("v_add_f32 v7, v%d, v%d" % (A_ + 2, A_ + 3))
    a("v_add_f32 v12, v%d, v%d" % (A_ + 4, A_ + 5))
    a("v_add_f32 v13, v%d, v%d" % (A_ + 6, A_ + 7))
    a("v_add_f32 v6, v6, v7")
    a("v_add_f32 v12, v12, v13")
    a("v_add_f32 v6, v6, v12")
    dpp_reduce63(a, [6])
    a("v_mul_f32 v6, %s, v6" % fhex(1.0 / 512))
    a("s_nop 0")
    a("v_readlane_b32 s32, v6, 63")
    a("s_nop 1")
    for e in range(8):
        a("v_subrev_f32 v%d, s32, v%d" % (X_ + e, A_ + e))
    a("v_mul_f32 v7, v%d, v%d" % (X_, X_))
    a("v_mul_f32 v12, v%d, v%d" % (X_ + 1, X_ + 1))
    for e in range(2, 8, 2):
        a("v_fmac_f32 v7, v%d, v%d" % (X_ + e, X_ + e))
        a("v_fmac_f32 v12, v%d, v%d" % (X_ + e + 1, X_ + e + 1))
    a("v_add_f32 v7, v7, v12")
    dpp_reduce63(a, [7])
    a("v_mul_f32 v7, %s, v7" % fhex(1.0 / 512))
    bf16_round(a, 6, 6)
    bf16_round(a, 7, 7)
    a("v_add_f32 v7, %s, v7" % fhex(1e-5))
    bf16_round(a, 7, 7)
    a("v_sqrt_f32 v7, v7")
    a("s_nop 0")
    bf16_round(a, 7, 7)
    a("v_rcp_f32 v7, v7")
    a("s_nop 0")
    a("v_mul_f32 v6, v6, v7")
    a("v_sub_f32 v6, 0, v6")
    a("v_readlane_b32 s32, v7, 63")
    a("v_readlane_b32 s33, v6, 63")
    a("""
    v_lshrrev_b32 v6, 1, v1
    v_lshlrev_b32 v6, 10, v6
    v_and_b32 v7, 1, v1
    v_lshl_add_u32 v6, v7, 9, v6
    s_lshr_b32 s31, s29, 5
    s_lshl_b32 s31, s31, 15
    s_and_b32 s34, s29, 31
    s_lshl_b32 s34, s34, 4
    s_add_u32 s31, s31, s34
    s_add_u32 s31, s31, %d
    """ % H2F)
    for p in range(4):
        t = A_ + 2 * p
        a("v_pk_fma_f32 %s, %s, s[32:33], s[32:33] op_sel:[0,0,1] op_sel_hi:[1,0,1]" % (vr(t, 2), vr(t, 2)))
        a("v_pk_fma_f32 %s, %s, %s, %s" % (vr(t, 2), vr(t, 2), vr(G2 + 2 * p, 2), vr(SB + 2 * p, 2)))
        a("v_cvt_pk_bf16_f32 v%d, v%d, v%d" % (X_ + p, t, t + 1))
    a("buffer_store_dwordx4 %s, v6, s[12:15], s31 offen" % vr(X_, 4))
    st.dump()
    a.label("L_k3_end")
    a("s_endpgm")

    a.label("L_k3_slow")
    a.vm = list(vm_entry)
    a.lg = []
    a.wait_vm_all()
    a("s_add_u32 s22, s21, 4096")
    a("v_and_b32 v12, 31, v0")
    a("v_lshlrev_b32 v12, 2, v12")
    for j in range(8):
        a("buffer_load_dwordx4 %s, v2, s[12:15], s%d offen offset:%d" % (vr(AF, 4), 21 if j < 4 else 22, 1024 * (j & 3)))
        a("v_mov_b32 v6, 0xff800000")
        a("s_waitcnt vmcnt(0)")
        for tt in range(8):
            a("v_mfma_f32_32x32x16_bf16 %s, %s, %s, 0" % (vr(S0, 16), vr(KR + 4 * tt, 4), vr(AF, 4)))
            a("s_nop 11")
            for r in range(0, 16, 2):
                a("v_max3_f32 v6, v6, v%d, v%d" % (S0 + r, S0 + r + 1))
        a("ds_max_f32 v12, v6 offset:%d" % (L_MX + 128 * j))
    a("s_waitcnt lgkmcnt(0)")
    a("s_barrier")
    main(True)
    assert a.vm == vm_exit, (a.vm, vm_exit)
    a("s_branch L_k3_tail")
    return a.text(), 256


def gen_k4():
    a = Asm()
    H, ACC, R = 8, 136, 184
    a("s_cmp_ge_u32 s2, 240")
    a("s_cbranch_scc1 L_k4_end")
    st = Stamper(a, 3)
    st.start()
    a("s_load_dwordx2 s[6:7], s[0:1], %d" % A_WS)
    wave_id(a, 3, 1)
    a("""
    s_and_b32 s20, s2, 7
    s_lshr_b32 s21, s2, 3
    s_cmp_ge_u32 s21, 15
    s_cselect_b32 s22, 4, 0
    s_cselect_b32 s23, 15, 0
    s_sub_u32 s21, s21, s23
    s_lshl_b32 s20, s20, 3
    s_add_u32 s20, s20, s22
    s_add_u32 s20, s20, s3
    s_mul_i32 s21, s21, 3
    v_and_b32 v1, 63, v0
    v_lshlrev_b32 v2, 4, v1
    s_lshl_b32 s24, s20, 15
    s_add_u32 s24, s24, %d
    s_lshl_b32 s25, s21, 15
    s_lshl_b32 s26, s3, 11
    s_add_u32 s25, s25, s26
    s_waitcnt lgkmcnt(0)
    """ % H2F)
    a.srd(12, 6, WS_SIZE)
    a.srd_off(8, 6, W1F, 43 * 32768)
    for s in range(4):
        for c in range(3):
            a("s_add_u32 m0, s26, %d" % (c * 32768 + s * 8192))
            a("s_add_u32 s27, s25, %d" % (c * 32768 + s * 8192))
            a.vmem("buffer_load_dwordx4 v2, s[8:11], s27 offen lds", ("st", s))
            a.vmem("buffer_load_dwordx4 v2, s[8:11], s27 offen offset:1024 lds", ("st", s))
        for hh in range(2):
            a("s_add_u32 s27, s24, %d" % (s * 8192 + hh * 4096))
            for q in range(4):
                a.vmem("buffer_load_dwordx4 %s, v2, s[12:15], s27 offen offset:%d" % (vr(H + 32 * s + 16 * hh + 4 * q, 4), 1024 * q), ("st", s))
    a("v_add_u32 v3, 0x10000, v2")
    seq = [(s, k, c) for s in range(4) for k in range(8) for c in range(3)]

    def rd(n):
        s, k, c = seq[n]
        off = c * 32768 + (8 * s + k) * 1024
        base = 2 if off < 65536 else 3
        a.ds("ds_read_b128 %s, v%d offset:%d" % (vr(R + 4 * (n & 7), 4), base, off & 0xffff), ("r", n))
    nread = 0
    for n, (s, k, c) in enumerate(seq):
        if k == 0 and c == 0:
            if STAMPS:
                a.wait_lg_all()
                st.stamp()
            a.wait_vm(("st", s))
            a("s_barrier")
            if STAMPS:
                st.stamp()
                a("s_waitcnt lgkmcnt(0)")
        while nread < len(seq) and nread < n + 7 and seq[nread][0] == s:
            rd(nread)
            nread += 1
        a.wait_lg(("r", n))
        a("v_mfma_f32_32x32x16_bf16 %s, %s, %s, %s" % (vr(ACC + 16 * c, 16), vr(R + 4 * (n & 7), 4), vr(H + 4 * (8 * s + k), 4),
                                                       "0" if (s == 0 and k == 0) else vr(ACC + 16 * c, 16)))
    st.stamp()
    a("s_mul_i32 s27, s20, %d" % (86 * 1024))
    a("s_lshl_b32 s28, s21, 11")
    a("s_add_u32 s27, s27, s28")
    a("s_add_u32 s27, s27, %d" % GF)
    a("s_mov_b32 s30, %s" % fhex(-LOG2E))
    a("s_mov_b32 s31, s30")
    a("s_nop 6")
    for c in range(3):
        if c == 1:
            a("s_cmp_eq_u32 s21, 42")
            a("s_cbranch_scc1 L_k4_end")
        y = ACC + 16 * c
        T = H
        for r in range(0, 16, 2):
            a("v_pk_mul_f32 %s, %s, s[30:31]" % (vr(T + r, 2), vr(y + r, 2)))
        for r in range(16):
            a("v_exp_f32 v%d, v%d" % (T + r, T + r))
        for r in range(0, 16, 2):
            a("v_pk_add_f32 %s, %s, 1.0 op_sel_hi:[1,0]" % (vr(T + r, 2), vr(T + r, 2)))
        for r in range(16):
            a("v_rcp_f32 v%d, v%d" % (T + r, T + r))
        for r in range(0, 16, 2):
            a("v_pk_mul_f32 %s, %s, %s" % (vr(T + r, 2), vr(T + r, 2), vr(y + r, 2)))
        P = H + 16 + 8 * c
        for r in range(0, 16, 2):
            a("v_cvt_pk_bf16_f32 v%d, v%d, v%d" % (P + r // 2, T + r, T + r + 1))
        if c == 2:
            a("s_add_u32 s27, s27, 4096")
        off = 2048 * (c & 1)
        a("buffer_store_dwordx4 %s, v2, s[12:15], s27 offen offset:%d" % (vr(P, 4), off))
        a("buffer_store_dwordx4 %s, v2, s[12:15], s27 offen offset:%d" % (vr(P + 4, 4), off + 1024))
    st.dump()
    a.label("L_k4_end")
    a("s_endpgm")
    return a.text(), 256 if STAMPS else 216


def gen_k5():
    a = Asm()
    ACC, R, DEPTH = 16, 80, 10
    NS = 22
    a("s_cmp_ge_u32 s2, 256")
    a("s_cbranch_scc1 L_k5_end")
    st = Stamper(a, 4)
    st.start()
    a("s_load_dwordx2 s[4:5], s[0:1], %d" % A_OUT)
    a("s_load_dwordx2 s[6:7], s[0:1], %d" % A_WS)
    wave_id(a, 3, 1)
    a("""
    s_and_b32 s20, s2, 7
    s_lshr_b32 s21, s2, 3
    s_lshr_b32 s22, s21, 3
    s_and_b32 s21, s21, 7
    s_lshl_b32 s20, s20, 3
    s_lshl_b32 s22, s22, 1
    s_add_u32 s20, s20, s22
    s_lshl_b32 s21, s21, 1
    s_mul_i32 s22, s3, 22
    s_cmp_eq_u32 s3, 3
    s_cselect_b32 s23, 1, 0
    s_sub_u32 s22, s22, s23
    s_lshl_b32 s22, s22, 10
    s_mul_i32 s24, s20, %d
    s_add_u32 s24, s24, s22
    s_add_u32 s24, s24, %d
    s_add_u32 s25, s24, %d
    s_mul_i32 s26, s21, %d
    s_add_u32 s26, s26, s22
    s_add_u32 s26, s26, %d
    s_add_u32 s27, s26, %d
    v_and_b32 v1, 63, v0
    v_lshlrev_b32 v2, 4, v1
    s_waitcnt lgkmcnt(0)
    """ % (86 * 1024, GF, 86 * 1024, 86 * 1024, W2F, 86 * 1024))
    a.srd(12, 6, WS_SIZE)
    a.srd(8, 4, 2048 * 1024)

    def ld(k):
        b = R + 16 * (k % DEPTH)
        if k > 0 and k % 4 == 0:
            for s in range(24, 28):
                a("s_add_u32 s%d, s%d, 4096" % (s, s))
        if k == NS - 1:
            a("s_cmp_ge_u32 s3, 2")
            for s in range(24, 28):
                a("s_cselect_b32 s%d, 0x%x, s%d" % (s, WS_SIZE, s))
        for i in range(4):
            a.vmem("buffer_load_dwordx4 %s, v2, s[12:15], s%d offen offset:%d" % (vr(b + 4 * i, 4), 24 + i, 1024 * (k & 3)), ("k", k))
    for k in range(DEPTH):
        ld(k)
    a("""
    s_lshr_b32 s28, s3, 1
    s_add_u32 s28, s28, s20
    s_and_b32 s29, s3, 1
    s_add_u32 s29, s29, s21
    s_lshl_b32 s30, s28, 15
    s_lshl_b32 s31, s29, 6
    s_add_u32 s30, s30, s31
    s_add_u32 s31, s30, %d
    s_lshl_b32 s32, s29, 7
    s_add_u32 s32, s32, %d
    v_and_b32 v3, 31, v0
    v_lshlrev_b32 v3, 10, v3
    v_bfe_u32 v4, v0, 5, 1
    v_lshl_add_u32 v3, v4, 3, v3
    v_lshlrev_b32 v4, 4, v4
    """ % (X1, MOD + 5 * 2048))
    st.stamp()
    for k in range(NS):
        a.wait_vm(("k", k))
        if k in (0, 5, 10, 15, 21):
            st.stamp()
        b = R + 16 * (k % DEPTH)
        for rt in range(2):
            for ct in range(2):
                acc = ACC + 16 * (2 * rt + ct)
                a("v_mfma_f32_32x32x16_bf16 %s, %s, %s, %s" % (vr(acc, 16), vr(b + 8 + 4 * ct, 4), vr(b + 4 * rt, 4), "0" if k == 0 else vr(acc, 16)))
        if k + DEPTH < NS:
            ld(k + DEPTH)
        if k == NS - DEPTH:
            for q in range(4):
                a.vmem("buffer_load_dwordx2 %s, v3, s[12:15], s31 offen offset:%d" % (vr(8 + 2 * q, 2), 16 * q), "ep")
            for q in range(4):
                a.vmem("buffer_load_dwordx4 %s, v4, s[12:15], s32 offen offset:%d" % (vr(240 + 4 * q, 4), 32 * q), "ep")
    a("s_lshl_b32 s33, s3, 12")
    a("v_add_u32 v5, s33, v2")
    a("s_lshl_b32 s33, s3, 14")
    a("v_add_u32 v6, s33, v2")
    a("s_nop 8")
    for t in range(4):
        for q in range(4):
            a("ds_write_b128 v5, %s offset:%d" % (vr(ACC + 16 * t + 4 * q, 4), 16384 * t + 1024 * q))
    a("s_waitcnt lgkmcnt(0)")
    st.stamp()
    a("s_barrier")
    st.stamp()
    for w in range(4):
        for q in range(4):
            a("ds_read_b128 %s, v6 offset:%d" % (vr(ACC + 16 * w + 4 * q, 4), 4096 * w + 1024 * q))
    a("s_waitcnt lgkmcnt(0)")
    for r in range(0, 16, 2):
        a("v_pk_add_f32 %s, %s, %s" % (vr(ACC + r, 2), vr(ACC + r, 2), vr(ACC + 16 + r, 2)))
        a("v_pk_add_f32 %s, %s, %s" % (vr(ACC + 32 + r, 2), vr(ACC + 32 + r, 2), vr(ACC + 48 + r, 2)))
    for r in range(0, 16, 2):
        a("v_pk_add_f32 %s, %s, %s" % (vr(ACC + r, 2), vr(ACC + r, 2), vr(ACC + 32 + r, 2)))
    a.wait_vm_all()
    for p in range(8):
        a("v_lshlrev_b32 v%d, 16, v%d" % (ACC + 16 + 2 * p, 8 + p))
        a("v_and_b32 v%d, 0xffff0000, v%d" % (ACC + 17 + 2 * p, 8 + p))
    for r in range(0, 16, 2):
        a("v_pk_fma_f32 %s, %s, %s, %s" % (vr(ACC + r, 2), vr(ACC + r, 2), vr(240 + r, 2), vr(ACC + 16 + r, 2)))
    for p in range(8):
        a("v_cvt_pk_bf16_f32 v%d, v%d, v%d" % (8 + p, ACC + 2 * p, ACC + 2 * p + 1))
    for q in range(4):
        a("buffer_store_dwordx2 %s, v3, s[8:11], s30 offen offset:%d" % (vr(8 + 2 * q, 2), 16 * q))
    st.dump()
    a.label("L_k5_end")
    a("s_endpgm")
    return a.text(), 256


def main():
    ks = [("k1_kernel", gen_k1, (504, 256, 1024)),
          ("k2_kernel", gen_k2, (256, 320, 32768)),
          ("k3_kernel", gen_k3, (256, 512, K3_LDS)),
          ("k4_kernel", gen_k4, (240, 256, 98304)),
          ("k5_kernel", gen_k5, (256, 256, 65536))]
    out = "; adaLN + MQA attention + SiLU MLP block, gfx950 (generated by gen/gen.py)\n"
    for n, g, (gx, bx, lds) in ks:
        out += "; @launch kernel=%s grid=(%d,1,1) block=(%d,1,1) lds=%d\n" % (n, gx, bx, lds)
    out += '.amdgcn_target "amdgcn-amd-amdhsa--gfx950"\n.text\n'
    descs = ""
    for n, g, _ in ks:
        body, vg = g()
        out += kernel_header(n) + body
        descs += kernel_desc(n, vg)
    out += '.section .rodata,"a"\n' + descs
    path = sys.argv[1] if len(sys.argv) > 1 else "cdna_kernels/%s.s" % NAME
    open(path, "w").write(out)
    print("wrote", path, len(out), "bytes")


if __name__ == "__main__":
    main()
```

```python
import sys, re
sys.path.insert(0, "gen")
import gen as G
from asmlib import *
probe = len(sys.argv) > 2 and sys.argv[2] == "probe"
aslist = len(sys.argv) > 3 and sys.argv[3] == "list"
KN = G.NAME + "_kernel"
out = []
def gbar(i):
    return f"""
L_phase{i}_end:
    s_mov_b64 exec, -1
    s_waitcnt vmcnt(0) lgkmcnt(0)
    s_barrier
    s_cmp_lg_u32 s97, 0
    s_cbranch_scc1 L_gb{i}_wait
    s_load_dwordx2 s[4:5], s[0:1], 88
    s_waitcnt lgkmcnt(0)
    s_mov_b32 s8, s4
    s_mov_b32 s9, s5
    s_mov_b32 s10, 256
    s_mov_b32 s11, 0x20000
    buffer_wbl2 sc1
    s_waitcnt vmcnt(0)
    v_mov_b32 v1, {4*i}
    v_mov_b32 v2, 1
    s_mov_b64 exec, 1
    buffer_atomic_add v2, v1, s[8:11], 0 offen sc1
    s_mov_b32 s12, 0
L_gb{i}_spin:
    s_sleep 1
    buffer_load_dword v2, v1, s[8:11], 0 offen sc1
    s_waitcnt vmcnt(0)
    v_readfirstlane_b32 s13, v2
    s_add_u32 s12, s12, 1
    s_cmp_gt_u32 s12, 200000
    s_cbranch_scc1 L_gb{i}_out
    s_cmp_lt_u32 s13, 256
    s_cbranch_scc1 L_gb{i}_spin
L_gb{i}_out:
    s_mov_b64 exec, -1
    buffer_inv sc1
    s_waitcnt vmcnt(0)
L_gb{i}_wait:
    s_barrier
"""
txt = """    s_cmp_ge_u32 s2, 256
    s_cbranch_scc1 L_exit
    s_memrealtime s[98:99]
    s_mov_b32 s96, s2
    v_lshrrev_b32 v1, 6, v0
    s_nop 0
    v_readfirstlane_b32 s97, v1
    s_waitcnt lgkmcnt(0)
"""
restore = """    s_mov_b32 s2, s96
    v_mbcnt_lo_u32_b32 v0, -1, 0
    v_mbcnt_hi_u32_b32 v0, -1, v0
    s_lshl_b32 s3, s97, 6
    v_add_u32 v0, s3, v0
"""
b, _ = G.gen_k1()
b = b.replace("s_endpgm", "s_branch L_phase1_end")
b = b.replace("ds_write_b32 v1, v32 offset:0", "v_add_u32 v1, s95, v1\n    ds_write_b32 v1, v32 offset:0")
b = b.replace("ds_read_b128 v[8:11], v1\n", "v_add_u32 v1, s95, v1\n    ds_read_b128 v[8:11], v1\n")
txt += """    s_lshr_b32 s3, s97, 2
    s_lshl_b32 s95, s3, 10
    s_lshl_b32 s2, s96, 1
    s_add_u32 s2, s2, s3
    v_and_b32 v0, 255, v0
""" + b + gbar(1)
def idle(i, first_idle, nbar):
    return f"    s_cmp_lt_u32 s97, {first_idle}\n    s_cbranch_scc1 L_p{i}_go\nL_p{i}_idle:\n" + "    s_barrier\n"*nbar + f"    s_branch L_phase{i}_end\nL_p{i}_go:\n"
b, _ = G.gen_k2()
b = b.replace("s_endpgm", "s_branch L_phase2_end")
b = b.replace("s_cmp_lg_u32 s21, 0\n    s_cbranch_scc1 L_k2_end", "s_cmp_lg_u32 s21, 0\n    s_cbranch_scc1 L_p2_idle")
txt += restore + idle(2, 5, 1) + b + gbar(2)
b, _ = G.gen_k3()
b = b.replace("s_endpgm", "s_branch L_phase3_end")
txt += restore + b + gbar(3)
b, _ = G.gen_k4()
b = b.replace("s_endpgm", "s_branch L_phase4_end")
txt += restore + "    s_cmp_ge_u32 s2, 240\n    s_cbranch_scc1 L_phase4_end\n" + idle(4, 4, 4) + b + gbar(4)
b, _ = G.gen_k5()
b = b.replace("s_endpgm", "s_branch L_phase5_end")
txt += restore + idle(5, 4, 1) + b + "L_phase5_end:\n"
if probe:
    txt += """    s_cmp_lg_u32 s96, 0
    s_cbranch_scc1 L_exit
    s_add_u32 s8, s98, 12000
    s_mov_b32 s10, 0
L_spin6:
    s_add_u32 s10, s10, 1
    s_cmp_gt_u32 s10, 4000
    s_cbranch_scc1 L_exit
    s_sleep 2
    s_memrealtime s[6:7]
    s_waitcnt lgkmcnt(0)
    s_sub_u32 s9, s6, s8
    s_cmp_lt_i32 s9, 0
    s_cbranch_scc1 L_spin6
"""
txt += "L_exit:\n    s_endpgm\n"
hdr = "; mega hack\n"
if aslist: hdr += f"; @launch kernel={KN} grid=(256,1,1) block=(512,1,1) lds=98304\n"
else: hdr += "; @launch grid=(256,1,1) block=(512,1,1) lds=98304\n"
hdr += '.amdgcn_target "amdgcn-amd-amdhsa--gfx950"\n.text\n' + kernel_header(KN) + txt + '.section .rodata,"a"\n' + kernel_desc(KN, 256, sgpr=102)
open(sys.argv[1], "w").write(hdr)
```
